```python
import torch

def _softmax(x, axis=-1):
    return torch.softmax(x, dim=axis)
def _gelu(x):
    return torch.nn.functional.gelu(x, approximate="tanh")
def _silu(x):
    return torch.nn.functional.silu(x)
def _sigmoid(x):
    return torch.sigmoid(x)
def _layernorm(x, axis=-1, eps=1e-5):
    m = x.mean(dim=axis, keepdim=True)
    v = x.var(dim=axis, keepdim=True, unbiased=False)
    return (x - m) / torch.sqrt(v + eps)
def _scatter_add(tgt, idx, src, axis=0):
    return tgt.clone().index_add_(axis, idx, src)
def _segment_sum(src, seg, n):
    out = torch.zeros((n,) + src.shape[1:], dtype=src.dtype)
    return out.index_add_(0, seg, src)
def _pad(x, pw):
    flat = tuple(v for pair in reversed(pw) for v in pair)
    return torch.nn.functional.pad(x, flat)

kernel_name = 'recurrent_scan__sliding_block_cached__glu_gated_reglu__prompt'

def setup_inputs():

    _w = (lambda a: (lambda t: t.to(torch.bfloat16) if t.is_floating_point() else t)(torch.as_tensor(a)))
    def _A_setup():
        B, Sq, D = 1, 2048, 512
        Hq, Hkv, Sk, Dh = 32, 8, 2048, 128
        assert Hq % Hkv == 0, (Hq, Hkv)
        return {
            "x": _w((lambda *s: torch.randn(*s, dtype=torch.bfloat16) * 0.05)(B, Sq, D)),
            "k_cache": _w((lambda *s: torch.randn(*s, dtype=torch.bfloat16) * 1.6)(B, Hkv, Sk, Dh)),
            "v_cache": _w((lambda *s: torch.randn(*s, dtype=torch.bfloat16) * 1.6)(B, Hkv, Sk, Dh)),
            "wq": _w((lambda *s: torch.randn(*s, dtype=torch.bfloat16) * 1.6)(D, Hq * Dh) * (D ** -0.5)),
            "wo": _w((lambda *s: torch.randn(*s, dtype=torch.bfloat16) * 1.6)(Hq * Dh, D) * ((Hq * Dh) ** -0.5)),
        }
    _A_in = _A_setup()

    def _B_setup():
        B, S, D, F = 1, 2048, 512, 1792
        return {
            "x": _w((lambda *s: torch.randn(*s, dtype=torch.bfloat16) * 0.05)(B, S, D)),
            "W_gate": _w((lambda *s: torch.randn(*s, dtype=torch.bfloat16) * 0.2)(D, F) * (2.0 / D) ** 0.5),
            "W_up": _w((lambda *s: torch.randn(*s, dtype=torch.bfloat16) * 0.2)(D, F) * (2.0 / D) ** 0.5),
            "W_down": _w((lambda *s: torch.randn(*s, dtype=torch.bfloat16) * 0.2)(F, D) * (1.0 / F) ** 0.5),
        }
    _B_in = _B_setup()

    return {
        "A_x": _A_in["x"],
        "A_k_cache": _A_in["k_cache"],
        "A_v_cache": _A_in["v_cache"],
        "A_wq": _A_in["wq"],
        "A_wo": _A_in["wo"],
        "B_x": _B_in["x"],
        "B_W_gate": _B_in["W_gate"],
        "B_W_up": _B_in["W_up"],
        "B_W_down": _B_in["W_down"],
    }

def reference(A_x, A_k_cache, A_v_cache, A_wq, A_wo, B_x, B_W_gate, B_W_up, B_W_down):
    def _A_ref(x, k_cache, v_cache, wq, wo):
        B, Sq, D = x.shape
        Hq, Dh = 32, 128
        Hkv, Sk = k_cache.shape[1], k_cache.shape[2]
        W = min(4096, max(256, Sk // 4))
        rep = Hq // Hkv
        q = (lambda x, *d: x.permute(*d))((x @ wq).reshape(B, Sq, Hq, Dh), 0, 2, 1, 3)
        k = (lambda x, n, axis: torch.repeat_interleave(x, n, dim=axis))(k_cache[:, :, Sk - W:, :], rep, axis=1)
        v = (lambda x, n, axis: torch.repeat_interleave(x, n, dim=axis))(v_cache[:, :, Sk - W:, :], rep, axis=1)
        scores = torch.einsum("bhqd,bhkd->bhqk", q, k) * (Dh ** -0.5)
        p = _softmax(scores, axis=-1)
        o = torch.einsum("bhqk,bhkd->bhqd", p, v)
        return (lambda x, *d: x.permute(*d))(o, 0, 2, 1, 3).reshape(B, Sq, Hq * Dh) @ wo

    def _B_ref(x, W_gate, W_up, W_down):
        gate = torch.einsum("bsd,df->bsf", x, W_gate)
        up = torch.einsum("bsd,df->bsf", x, W_up)
        gate = gate * (lambda x, dt: x.to(dt))(gate > 0, gate.dtype)
        h = gate * up
        return torch.einsum("bsf,fd->bsd", h, W_down)

    x = A_x
    xn = _layernorm(x, axis=-1)
    s = _A_ref(xn, A_k_cache, A_v_cache, A_wq, A_wo)
    g = _silu(_B_ref(xn, B_W_gate, B_W_up, B_W_down))
    return x + s * g
```

```python
class R:
    __slots__ = ("t", "n", "c")
    def __init__(self, t, n, c=1):
        self.t, self.n, self.c = t, n, c
    def __str__(self):
        return f"{self.t}{self.n}" if self.c == 1 else f"{self.t}[{self.n}:{self.n+self.c-1}]"
    def regs(self):
        return [f"{self.t}{i}" for i in range(self.n, self.n + self.c)]
    def sub(self, off, c=1):
        assert 0 <= off and off + c <= self.c, (str(self), off, c)
        return R(self.t, self.n + off, c)
    def __getitem__(self, i):
        return self.sub(i, 1)

def V(n, c=1):
    assert 0 <= n and n + c <= 256, (n, c)
    return R("v", n, c)
def A(n, c=1):
    assert 0 <= n and n + c <= 256, (n, c)
    return R("a", n, c)
def S(n, c=1):
    assert 0 <= n and n + c <= 102, (n, c)
    return R("s", n, c)

SPECIAL = {"vcc": ["vcc"], "exec": ["exec"], "m0": ["m0"], "scc": ["scc"]}

def regs_of(x):
    if isinstance(x, R): return x.regs()
    if isinstance(x, str):
        y = x.lstrip("-")
        if y in SPECIAL: return SPECIAL[y]
    if isinstance(x, Neg): return regs_of(x.x)
    return []

class Neg:
    def __init__(self, x): self.x = x
    def __str__(self): return "-" + str(self.x)

def fmt(x):
    if isinstance(x, bool): raise ValueError
    if isinstance(x, int):
        if -16 <= x <= 64: return str(x)
        return hex(x & 0xffffffff)
    if isinstance(x, float):
        return {0.5: "0.5", 1.0: "1.0", 2.0: "2.0", 4.0: "4.0", -0.5: "-0.5", -1.0: "-1.0", -2.0: "-2.0", -4.0: "-4.0"}[x]
    return str(x)

TRANS = {"v_exp_f32", "v_rcp_f32", "v_rsq_f32", "v_log_f32", "v_sqrt_f32"}
RMW = {"v_fmac_f32", "v_dot2c_f32_bf16"}

class I:
    __slots__ = ("text", "kind", "rd", "wr", "srcc", "passes", "after", "cost", "tag", "wide", "n")
    def __init__(self, text, kind, rd=(), wr=(), cost=1):
        self.text, self.kind = text, kind
        self.rd, self.wr = set(rd), set(wr)
        self.srcc = set(); self.passes = 0; self.after = []; self.cost = cost
        self.tag = None; self.wide = set(); self.n = 0
    def dep(self, *ops):
        for o in ops:
            if o is None: continue
            if isinstance(o, (list, tuple)): self.dep(*o)
            else: self.after.append(o)
        return self

def valu(op, dst, *srcs, mods=""):
    rd = [r for s in srcs for r in regs_of(s)]
    wr = regs_of(dst)
    base = op.replace("_e32", "").replace("_e64", "").replace("_dpp", "")
    if base in RMW: rd += wr
    kind = "trans" if base in TRANS else "valu"
    if base.startswith("v_permlane"):
        rd += wr; wr = wr + [r for s in srcs for r in regs_of(s)]; kind = "permlane"
    if base.startswith("v_readfirstlane") or base.startswith("v_readlane"): kind = "readlane"
    if op.endswith("_dpp"): kind = "dpp"
    if base.startswith("v_cndmask") and len(srcs) == 2: rd += ["vcc"]
    t = f"{op} {fmt(dst)}" + "".join(", " + fmt(s) for s in srcs) + (" " + mods if mods else "")
    return I(t, kind, rd, wr, cost=2 if kind == "trans" else 1)

def salu(op, dst, *srcs):
    rd = [r for s in srcs for r in regs_of(s)]
    wr = regs_of(dst)
    if op.startswith("s_cmp"):
        rd += wr; wr = ["scc"]
    if op in ("s_addc_u32", "s_cselect_b32", "s_cselect_b64"): rd += ["scc"]
    t = f"{op} {fmt(dst)}" + "".join(", " + fmt(s) for s in srcs)
    return I(t, "salu", rd, wr)

def mfma(d, a, b, c, shape="32x32x16"):
    passes = 8 if shape == "32x32x16" else 4
    t = f"v_mfma_f32_{shape}_bf16 {d}, {a}, {b}, {fmt(c)}"
    i = I(t, "mfma", regs_of(a) + regs_of(b) + regs_of(c), regs_of(d), cost=2)
    i.srcc = set(regs_of(c)); i.passes = passes
    return i

def ds_read(dst, addr, off=0, op=None):
    op = op or {1: "ds_read_b32", 2: "ds_read_b64", 4: "ds_read_b128"}[dst.c]
    assert 0 <= off < 65536, off
    t = f"{op} {dst}, {addr}" + (f" offset:{off}" if off else "")
    return I(t, "ds_rd", regs_of(addr), regs_of(dst))

def ds_read_tr(dst, addr, off=0):
    return ds_read(dst, addr, off, "ds_read_b64_tr_b16")

def ds_write(addr, data, off=0):
    op = {1: "ds_write_b32", 2: "ds_write_b64", 4: "ds_write_b128"}[data.c]
    assert 0 <= off < 65536, off
    t = f"{op} {addr}, {data}" + (f" offset:{off}" if off else "")
    i = I(t, "ds_wr", regs_of(addr) + regs_of(data), [], cost=3 if data.c == 4 else 1)
    if data.c >= 3: i.wide = set(regs_of(data))
    return i

def _buf(op, data, voff, srd, soff, off, mods):
    assert 0 <= off < 4096, off
    s = f"{op} " + (f"{data}, " if data is not None else "") + f"{voff}, {srd}, {fmt(soff)} offen"
    if off: s += f" offset:{off}"
    if mods: s += " " + mods
    return s

def buf_load(dst, voff, srd, soff=0, off=0, mods=""):
    op = {1: "buffer_load_dword", 2: "buffer_load_dwordx2", 4: "buffer_load_dwordx4"}[dst.c]
    return I(_buf(op, dst, voff, srd, soff, off, mods), "vload", regs_of(voff) + regs_of(srd) + regs_of(soff), regs_of(dst))

def buf_store(data, voff, srd, soff=0, off=0, mods=""):
    op = {1: "buffer_store_dword", 2: "buffer_store_dwordx2", 4: "buffer_store_dwordx4"}[data.c]
    i = I(_buf(op, data, voff, srd, soff, off, mods), "vstore", regs_of(voff) + regs_of(srd) + regs_of(soff) + regs_of(data), [])
    if data.c >= 3: i.wide = set(regs_of(data))
    return i

def dma(voff, srd, soff=0, off=0, mods=""):
    m = "lds" + (" " + mods if mods else "")
    s = _buf("buffer_load_dwordx4", None, voff, srd, soff, off, "")
    s += " " + m
    return I(s, "dma", regs_of(voff) + regs_of(srd) + regs_of(soff) + ["m0"], [])

def raw(text, kind="other", rd=(), wr=()):
    return I(text, kind, rd, wr)

def label(name): return I(name + ":", "label")
def barrier(): return I("s_barrier", "barrier")
def waitfor(*ops):
    return I("", "pseudo").dep(*ops)
def drain(vm=True, lgkm=True):
    i = I("", "drain"); i.tag = (vm, lgkm); return i
def nop(n): return I(f"s_nop {n}", "nop")

VM = ("vload", "vstore", "dma", "vatomic")
DS = ("ds_rd", "ds_wr")
VALUISH = ("valu", "trans", "permlane", "readlane", "dpp")

class Prog:
    def __init__(self):
        self.ins = []
    def __call__(self, *xs):
        for x in xs:
            if x is None: continue
            if isinstance(x, (list, tuple)): self(*x)
            else: self.ins.append(x)
        return xs[-1] if xs else None

    def finalize(self):
        out = []
        hist = []
        pos = 0
        vmq, dsq = [], []
        pend_vm, pend_ds = {}, {}
        stats = {"nop": 0, "wait": 0}
        def emit(text, i=None, states=1):
            nonlocal pos
            out.append(text)
            if i is not None: hist.append((i, pos))
            pos += states
            if len(hist) > 40: del hist[:len(hist) - 40]
        def do_wait(vm_n, ds_n):
            parts = []
            if vm_n is not None:
                assert vm_n <= 63
                parts.append(f"vmcnt({vm_n})")
                done = vmq[:len(vmq) - vm_n]; del vmq[:len(vmq) - vm_n]
                for o in done:
                    for r in o.wr:
                        if pend_vm.get(r) is o: del pend_vm[r]
            if ds_n is not None:
                ds_n = min(ds_n, 15)
                parts.append(f"lgkmcnt({ds_n})")
                k = max(len(dsq) - ds_n, 0)
                done = dsq[:k]; del dsq[:k]
                for o in done:
                    for r in o.wr:
                        if pend_ds.get(r) is o: del pend_ds[r]
            emit("s_waitcnt " + " ".join(parts)); stats["wait"] += 1
        for i in self.ins:
            if i.kind == "drain":
                vm, lg = i.tag
                do_wait(0 if vm else None, 0 if lg else None)
                continue
            need_vm, need_ds = [], []
            touched = i.rd | i.wr
            for r in touched:
                if r in pend_vm: need_vm.append(pend_vm[r])
                if r in pend_ds: need_ds.append(pend_ds[r])
            for o in i.after:
                if o.kind in VM: need_vm.append(o)
                elif o.kind in DS: need_ds.append(o)
                else: raise ValueError(o.text)
            vm_n = ds_n = None
            idx = [vmq.index(o) for o in need_vm if o in vmq]
            if idx: vm_n = len(vmq) - 1 - max(idx)
            idx = [dsq.index(o) for o in need_ds if o in dsq]
            if idx: ds_n = len(dsq) - 1 - max(idx)
            if vm_n is not None and vm_n > 63: vm_n = 63
            if vm_n is not None or ds_n is not None:
                do_wait(vm_n, ds_n)
            if i.kind == "pseudo": continue
            need = 0
            for (p, ppos) in hist:
                d = pos - ppos - 1
                req = hazard(p, i)
                if req > d: need = max(need, req - d)
            while need > 0:
                n = min(need, 16)
                emit(f"s_nop {n-1}", None, n); stats["nop"] += n
                need -= n
            if len(vmq) >= 63 and i.kind in VM:
                do_wait(60, None)
            states = 1
            if i.kind == "nop": states = int(i.text.split()[1]) + 1
            emit(i.text, i, states)
            if i.kind in VM:
                vmq.append(i)
                for r in i.wr: pend_vm[r] = i
            elif i.kind in DS:
                dsq.append(i)
                for r in i.wr: pend_ds[r] = i
                if len(dsq) > 64:
                    pass
        return out, stats

def is_sgpr(r): return r[0] == "s" and r != "scc" or r == "vcc"
def is_vgpr(r): return r[0] in "va" and r != "vcc"

def hazard(p, c):
    req = 0
    pk, ck = p.kind, c.kind
    pw_v = {r for r in p.wr if is_vgpr(r)}
    if pk in VALUISH:
        if ck == "mfma" and pw_v & c.rd: req = max(req, 2)
        if ck == "readlane" and pw_v & c.rd: req = max(req, 1)
        if ck in ("permlane", "dpp") and pw_v & c.rd: req = max(req, 2)
        if pk == "trans" and ck in VALUISH and ck != "trans" and pw_v & c.rd: req = max(req, 1)
        if pk == "trans" and ck in DS + VM and pw_v & c.rd: req = max(req, 1)
        pw_s = {r for r in p.wr if is_sgpr(r)}
        if pw_s & c.rd:
            if ck in VM: req = max(req, 5)
            elif ck in VALUISH or ck == "mfma": req = max(req, 2)
            elif ck == "salu": req = max(req, 1)
    if pk in VALUISH and p.text.startswith("v_dot2"):
        same = c.text.split()[0] == p.text.split()[0]
        if pw_v & (c.rd | c.wr):
            if not same: req = max(req, 3)
            else:
                ops = [o.strip() for o in c.text.split(None, 1)[1].split(",")]
                if any(o in pw_v for o in ops[1:3]): req = max(req, 3)
    if pk == "mfma":
        n = p.passes
        raw_n = {2: 5, 4: 8, 8: 12, 16: 20}[n]
        if ck == "mfma":
            if p.wr & c.srcc:
                if not (p.wr == c.srcc and p.passes == c.passes): req = max(req, {2: 4, 4: 6, 8: 10, 16: 18}[n])
            if p.wr & (c.rd - c.srcc): req = max(req, raw_n)
            if p.wr & c.wr and not (p.wr == c.wr and p.wr == c.srcc):
                if not (p.wr & c.srcc): req = max(req, {2: 4, 4: 6, 8: 10, 16: 18}[n])
        elif ck in VALUISH or ck in DS or ck in VM:
            if p.wr & (c.rd | c.wr): req = max(req, raw_n)
        if ck in VALUISH and (p.srcc - p.wr) & c.wr: req = max(req, {2: 1, 4: 3, 8: 7, 16: 15}[n])
        if ck in ("ds_rd", "vload") and (p.srcc - p.wr) & c.wr: req = max(req, {2: 1, 4: 3, 8: 7, 16: 15}[n])
    if pk == "salu" and "m0" in p.wr and ck == "dma": req = max(req, 1)
    if pk == "salu" and "exec" in p.wr and ck in ("permlane", "dpp", "readlane"): req = max(req, 1)
    if p.wide and ck in VALUISH and p.wide & c.wr: req = max(req, 2)
    if p.wide and ck in ("ds_rd", "vload", "mfma") and p.wide & c.wr: req = max(req, 1)
    return req
```

```python
import sys, struct, collections
from asmgen import *

NAME = "recurrent_scan__sliding_block_cached__glu_gated_reglu__prompt"

def f2u(x): return struct.unpack("<I", struct.pack("<f", x))[0]

H_BASE = 0
X_BASE = 28672
W_BASE = 94208
MISC = 159744
LDS_BYTES = 163840
K_SLOT = 8704; K_SLOTS = 3
V_OFF = K_SLOT * K_SLOTS; V_SLOT = 8192; V_SLOTS = 4
RING = 8
SLAB = 2048

WS_B = 0
WS_S = 16 << 20
WS_DUMP = 64 << 20
WS_STAMP = 128 << 20

sJ, sTB, sW = S(3), S(4), S(5)
srdX, srdQ, srdO, srdG, srdU, srdD, srdK, srdV, srdWS = (S(8 + 4 * i, 4) for i in range(9))
srdOut = S(44, 4)
sRing, sOff, sOffK, sOffV = S(48), S(49), S(50), S(51)
sKlds, sVlds = S(52), S(53)
sDbase, sPbase = S(54), S(55)
sBslab, sSslab = S(56), S(57)
sCs, sThr, sFb, sOnes = S(58), S(59), S(60), S(61)
sT0, sT1, sT2, sT3 = S(62), S(63), S(6), S(7)
sSt = S(96), S(97)
STAMP0 = 64

ACC = [V(0, 64), V(64, 64), V(128, 64)]
QLO = V(192, 32)
AF = V(224, 16)
vGU1, vGU2, vQ1, vQ2, vDP1, vDP2 = (V(240 + i) for i in range(6))
vTr = [V(246), V(247)]
vLin0, vLinX = V(248), V(249)
vXn = [V(250), V(251)]
vH = [V(252), V(253)]
vLinv = [V(254), V(255)]
SB = [V(64, 32), V(96, 32)]
NEGM = V(32, 32)
PF = V(128, 16)
vL = V(144, 4)
vMf = V(148, 2)
vT = V(150, 10)
vKr = [V(160), V(161)]
vVr = [V(162 + i) for i in range(4)]
vK1, vK2, vV1 = V(166), V(167), V(168)
OACC = A(0, 128)
KF = A(128, 32)
VF = A(160, 32)
BF = A(192, 16)

def qfrag(ks, nt):
    if ks < 4: return QLO.sub((ks * 2 + nt) * 4, 4)
    return V(((ks - 4) * 2 + nt) * 4, 4)

class Gen:
    def __init__(self, stamps=False, dumps=()):
        self.p = Prog()
        self.stamps = stamps
        self.dumps = set(dumps)
        self.nstamp = 0
        self.slabs = []
        self.slab_dma = {}
        self.slab_rd = {}
        self.bg = collections.deque()

    def stamp(self):
        if not self.stamps: return []
        k = self.nstamp; self.nstamp += 1
        assert k < 16
        return [raw(f"s_memtime s[{STAMP0+2*k}:{STAMP0+2*k+1}]", "other")]

    def dump(self, name, regs, region):
        if name not in self.dumps: return
        p = self.p
        p(drain())
        n = regs.c
        p(salu("s_lshl_b32", sT0, S(2), 2), salu("s_add_u32", sT0, sT0, sW),
          salu("s_mul_i32", sT0, sT0, 256 * 256), salu("s_add_u32", sT0, sT0, WS_DUMP + region * (1024 * 65536)))
        tmp = V(238)
        p(valu("v_lshrrev_b32", tmp, 2, vLin0))
        for i in range(n):
            src = regs[i]
            if src.t == "a":
                p(valu("v_accvgpr_read_b32", V(239), src)); src = V(239)
            p(salu("s_add_u32", sT1, sT0, i * 256))
            p(buf_store(src, tmp, srdWS, sT1))
            p(drain())

    def dump_lds(self, name, base, nbytes, region):
        if name not in self.dumps: return
        p = self.p
        p(drain(), barrier())
        q = nbytes // 4
        p(salu("s_mul_i32", sT0, S(2), 65536), salu("s_add_u32", sT0, sT0, WS_DUMP + region * (1024 * 65536)))
        p(salu("s_mul_i32", sT1, sW, q), salu("s_add_u32", sT0, sT0, sT1), salu("s_add_u32", sT1, sT1, base))
        p(valu("v_add_u32", V(238), sT1, vLin0))
        for i in range(q // 1024):
            p(ds_read(V(232, 4), V(238), i * 1024))
            p(salu("s_add_u32", sT2, sT0, i * 1024))
            p(buf_store(V(232, 4), vLin0, srdWS, sT2))
            p(drain())
        p(barrier())

    def build_stream(self):
        sl = []
        for s in range(32): sl.append((srdG, vGU1, vGU2, None, s * 16 * 3584))
        for s in range(32): sl.append((srdU, vGU1, vGU2, None, s * 16 * 3584))
        for ps in range(2):
            for s in range(32): sl.append((srdQ, vQ1, vQ2, None, s * 16 * 8192 + ps * 128))
        for ps in range(2):
            for s in range(14): sl.append((srdD, vDP1, vDP2, sDbase, s * 16384 + ps * 128))
        for ps in range(2):
            for s in range(32): sl.append((srdO, vDP1, vDP2, sPbase, s * 16384 + ps * 128))
        self.slabs = sl

    def issue_slab(self, idx):
        if idx >= len(self.slabs): return []
        srd, v1, v2, base, imm = self.slabs[idx]
        out = [salu("s_add_u32", "m0", sRing, (idx % RING) * SLAB)]
        if base is None: out.append(salu("s_mov_b32", sOff, imm))
        else: out.append(salu("s_add_u32", sOff, base, imm))
        d1 = dma(v1, srd, sOff, 0); d2 = dma(v2, srd, sOff, 1024)
        prev = self.slab_rd.get(idx - RING)
        if prev: d1.dep(prev)
        self.slab_dma[idx] = [d1, d2]
        return out + [d1, d2]

    def read_slab(self, idx, t):
        if idx >= len(self.slabs): return []
        dst = AF.sub((idx % 2) * 8 + t * 4, 4)
        off = (idx % RING) * SLAB
        r1 = ds_read_tr(dst.sub(0, 2), vTr[t], off)
        r2 = ds_read_tr(dst.sub(2, 2), vTr[t], off + 512)
        if t == 0: r1.dep(self.slab_dma[idx])
        self.slab_rd.setdefault(idx, []).extend([r1, r2])
        return [r1, r2]

    def fill(self, fixed, cap):
        used = sum(i.cost for i in fixed)
        out = list(fixed)
        while self.bg and used < cap:
            item = self.bg.popleft()
            if isinstance(item, list):
                out += item; used += sum(i.cost for i in item)
            else:
                out.append(item); used += item.cost
        return out

    def flush_bg(self):
        while self.bg:
            item = self.bg.popleft()
            self.p(item)

    def gemm_pass(self, first, nk, acc, bfrag, bload=None, extra=None, cap=6, bg_start=1, next_reads=True, issue=True):
        p = self.p
        for s in range(nk):
            sg = first + s
            last = (s == nk - 1)
            nxt = (not last) or next_reads
            a = [AF.sub((sg % 2) * 8 + t * 4, 4) for t in range(2)]
            gaps = [[], [], [], []]
            if nxt:
                r0 = self.read_slab(sg + 1, 0); r1 = self.read_slab(sg + 1, 1)
            else:
                r0 = r1 = []
            b0 = b1 = []
            if bload and not last:
                b0 = [bload(s + 1, 0)]; b1 = [bload(s + 1, 1)]
            gaps[0] = r0 + b0
            gaps[1] = b1 + r1
            if issue: gaps[3] = self.issue_slab(sg + RING)
            if extra:
                ex = extra(s)
                for g in range(4): gaps[g] = gaps[g] + ex[g]
            m = 0
            for t in range(2):
                for nt in range(2):
                    d = acc.sub((t * 2 + nt) * 16, 16)
                    p(mfma(d, a[t], bfrag(s, nt), 0 if s == 0 else d))
                    use_bg = (s * 4 + m) >= bg_start
                    p(self.fill(gaps[m], cap) if use_bg else gaps[m])
                    m += 1

    def prologue(self):
        p = self.p
        p(salu("s_cmp_ge_u32", S(2), 256), raw("s_cbranch_scc1 L_end", "branch"))
        p(raw("s_load_dwordx16 s[64:79], s[0:1], 0", "smem"), raw("s_load_dwordx8 s[80:87], s[0:1], 64", "smem"))
        lane = V(232); t0, t1, t2, t3 = V(233), V(234), V(235), V(236)
        p(valu("v_lshrrev_b32", t0, 6, V(0)), valu("v_and_b32", lane, 63, V(0)))
        p(valu("v_readfirstlane_b32", sW, t0))
        p(salu("s_and_b32", sJ, S(2), 7), salu("s_lshr_b32", sTB, S(2), 3))
        p(raw("s_waitcnt lgkmcnt(0)"))
        def srd(dst, src, nbytes):
            p(salu("s_mov_b32", dst[0], S(src)), salu("s_mov_b32", dst[1], S(src + 1)),
              salu("s_mov_b32", dst[2], nbytes), salu("s_mov_b32", dst[3], 0x20000))
        srd(srdX, 64, 2048 * 512 * 2)
        p(salu("s_lshl_b32", sT0, sTB, 6), salu("s_lshl_b32", sT1, sW, 4), salu("s_add_u32", sT0, sT0, sT1),
          salu("s_lshl_b32", sT0, sT0, 10))
        p(valu("v_lshrrev_b32", t0, 2, lane), valu("v_lshlrev_b32", t0, 10, t0),
          valu("v_and_b32", t1, 3, lane), valu("v_lshlrev_b32", t1, 4, t1),
          valu("v_add3_u32", t0, t0, t1, sT0))
        self.xloads = []
        for q in range(16):
            self.xloads.append(p(buf_load(V(4 * q, 4), t0, srdX, 0, q * 64)))
        srd(srdK, 66, 8 * 2048 * 128 * 2); srd(srdV, 68, 8 * 2048 * 128 * 2)
        srd(srdQ, 70, 512 * 4096 * 2); srd(srdO, 72, 4096 * 512 * 2)
        srd(srdG, 76, 512 * 1792 * 2); srd(srdU, 78, 512 * 1792 * 2)
        srd(srdD, 80, 1792 * 512 * 2); srd(srdWS, 86, 1 << 28)
        p(salu("s_lshl_b32", sRing, sW, 14), salu("s_add_u32", sRing, sRing, W_BASE))
        p(salu("s_mul_i32", sDbase, sJ, 224 * 1024), salu("s_mul_i32", sPbase, sJ, 512 * 1024))
        p(salu("s_lshl_b32", sT0, sTB, 3), salu("s_add_u32", sT0, sT0, sJ), salu("s_lshl_b32", sT0, sT0, 16),
          salu("s_lshl_b32", sT1, sW, 14), salu("s_add_u32", sBslab, sT0, sT1),
          salu("s_add_u32", sSslab, sBslab, WS_S))
        if WS_B: p(salu("s_add_u32", sBslab, sBslab, WS_B))
        p(salu("s_mov_b32", sCs, f2u(1.4426950408889634 / 128 ** 0.5)), salu("s_mov_b32", sThr, f2u(2.0 ** 64)),
          salu("s_mov_b32", sFb, 0), salu("s_mov_b32", sOnes, 0x3f803f80))
        p(salu("s_mul_i32", sKlds, sW, 2 * 1088), salu("s_add_u32", sKlds, sKlds, X_BASE),
          salu("s_lshl_b32", sVlds, sW, 11), salu("s_add_u32", sVlds, sVlds, X_BASE + V_OFF))
        row, swz = t1, t2
        p(valu("v_lshrrev_b32", row, 3, lane))
        p(valu("v_lshrrev_b32", t3, 4, lane), valu("v_and_b32", t3, 1, t3))
        p(valu("v_bfe_u32", swz, lane, 2, 1), valu("v_xor_b32", swz, swz, t3), valu("v_lshlrev_b32", swz, 6, swz))
        p(valu("v_and_b32", t3, 3, lane), valu("v_lshlrev_b32", t3, 4, t3), valu("v_add_u32", swz, swz, t3))
        p(salu("s_mul_i32", sT0, sJ, 448), salu("s_and_b32", sT1, sJ, 1),
          salu("s_lshl_b32", sT2, sW, 7), salu("s_add_u32", sT2, sT0, sT2))
        p(salu("s_lshl_b32", sT3, sT1, 6), salu("s_add_u32", sT2, sT2, sT3))
        p(salu("s_cmp_eq_u32", sW, 3), salu("s_cselect_b32", sT3, sT1, 0), salu("s_mul_i32", sT3, sT3, 512),
          salu("s_sub_u32", sT2, sT2, sT3))
        p(valu("v_mul_u32_u24", vGU1, 3584, row), valu("v_add3_u32", vGU1, vGU1, swz, sT2),
          valu("v_add_u32", vGU2, 8 * 3584 - 1024, vGU1))
        p(salu("s_lshl_b32", sT2, sW, 1), salu("s_add_u32", sT2, sT2, sT1))
        p(salu("s_lshl_b32", sT3, sT2, 12), salu("s_add_u32", sT0, sT3, 4096))
        p(salu("s_cmp_eq_u32", sT2, 6), salu("s_cselect_b32", sT0, MISC, sT0))
        p(salu("s_cmp_eq_u32", sT2, 7), salu("s_cselect_b32", sT3, MISC, sT3), salu("s_cselect_b32", sT0, 0, sT0))
        p(valu("v_lshlrev_b32", vLin0, 4, lane), valu("v_add_u32", vLinX, X_BASE, vLin0))
        p(valu("v_add_u32", vH[0], sT3, vLin0), valu("v_add_u32", vH[1], sT0, vLin0))
        for i in range(RING): p(self.issue_slab(i))
        p(salu("s_lshl_b32", sT0, sJ, 10), salu("s_lshl_b32", sT1, sW, 8), salu("s_add_u32", sT0, sT0, sT1))
        p(valu("v_lshlrev_b32", vQ1, 13, row), valu("v_add3_u32", vQ1, vQ1, swz, sT0),
          valu("v_add_u32", vQ2, 8 * 8192 - 1024, vQ1))
        p(valu("v_lshlrev_b32", vDP1, 10, row), valu("v_add3_u32", vDP1, vDP1, swz, sT1),
          valu("v_add_u32", vDP2, 8 * 1024 - 1024, vDP1))
        g1, r, c = t0, t1, t2
        p(valu("v_lshrrev_b32", g1, 5, lane), valu("v_lshlrev_b32", g1, 3, g1))
        p(valu("v_bfe_u32", r, lane, 2, 2), valu("v_add_u32", g1, g1, r), valu("v_lshlrev_b32", g1, 7, g1))
        p(valu("v_bfe_u32", t3, lane, 4, 1), valu("v_lshlrev_b32", t3, 5, t3), valu("v_add_u32", g1, g1, t3))
        p(valu("v_and_b32", c, 1, lane), valu("v_lshlrev_b32", c, 4, c),
          valu("v_bfe_u32", t3, lane, 1, 1), valu("v_lshlrev_b32", t3, 3, t3), valu("v_add3_u32", g1, g1, c, t3))
        p(valu("v_lshrrev_b32", r, 1, r), valu("v_lshlrev_b32", r, 6, r))
        p(valu("v_add3_u32", vTr[0], g1, r, sRing))
        p(valu("v_xor_b32", r, 64, r), valu("v_add3_u32", vTr[1], g1, r, sRing))
        p(valu("v_lshrrev_b32", t0, 5, lane), valu("v_lshlrev_b32", t0, 1, t0))
        p(valu("v_xor_b32", t1, lane, t0), valu("v_lshlrev_b32", t1, 4, t1), valu("v_add_u32", vXn[0], X_BASE, t1))
        p(valu("v_xor_b32", t1, 64, t1), valu("v_add_u32", vXn[1], X_BASE, t1))
        self.lane = lane

    def layernorm(self):
        p = self.p; lane = self.lane
        a0, a1, b0, b1 = V(64), V(65), V(66), V(67)
        for i in range(64):
            x = V(i); sa = (a0, a1)[i & 1]; sb = (b0, b1)[i & 1]
            p(valu("v_dot2_f32_bf16", sa, x, sOnes, 0 if i < 2 else sa))
            p(valu("v_dot2_f32_bf16", sb, x, x, 0 if i < 2 else sb))
        p(valu("v_add_f32", a0, a0, a1), valu("v_add_f32", b0, b0, b1))
        for perm in ("[1,0,3,2]", "[2,3,0,1]"):
            p(valu("v_add_f32_dpp", a0, a0, a0, mods=f"quad_perm:{perm} row_mask:0xf bank_mask:0xf"))
            p(valu("v_add_f32_dpp", b0, b0, b0, mods=f"quad_perm:{perm} row_mask:0xf bank_mask:0xf"))
        mean, var, rs, nb = V(68), V(69), V(70), V(72)
        p(valu("v_mul_f32", mean, f2u(1 / 512), a0), valu("v_mul_f32", var, f2u(1 / 512), b0))
        p(valu("v_fma_f32", var, Neg(mean), mean, var), valu("v_max_f32", var, 0, var),
          valu("v_add_f32", var, f2u(1e-5), var), valu("v_rsq_f32", rs, var))
        p(valu("v_mul_f32", nb, mean, rs), valu("v_sub_f32", nb, 0, nb))
        wa, t0, t1 = V(74), V(75), V(76)
        p(valu("v_lshrrev_b32", t0, 2, lane))
        p(salu("s_and_b32", sT0, sW, 1), salu("s_lshl_b32", sT0, sT0, 4))
        p(valu("v_add_u32", t0, sT0, t0))
        p(valu("v_and_b32", t1, 1, lane), valu("v_lshlrev_b32", t1, 5, t1), valu("v_add_u32", t0, t0, t1))
        p(valu("v_and_b32", t1, 3, lane), valu("v_lshlrev_b32", t1, 1, t1), valu("v_xor_b32", t0, t0, t1),
          valu("v_lshlrev_b32", t0, 4, t0))
        p(valu("v_bfe_u32", t1, lane, 1, 1), valu("v_lshlrev_b32", t1, 11, t1))
        p(salu("s_lshr_b32", sT0, sW, 1), salu("s_lshl_b32", sT0, sT0, 10), salu("s_add_u32", sT0, sT0, X_BASE))
        p(valu("v_add3_u32", wa, t0, t1, sT0))
        wr = []
        for q in range(16):
            for i in range(4):
                x = V(4 * q + i); t = V(80 + 2 * ((4 * q + i) % 8), 2)
                p(valu("v_lshlrev_b32", t[0], 16, x), valu("v_and_b32", t[1], 0xffff0000, x))
                p(valu("v_pk_fma_f32", t, t, V(70, 2), V(72, 2), mods="op_sel_hi:[1,0,0]"))
                p(valu("v_cvt_pk_bf16_f32", x, t[0], t[1]))
            wr.append(p(ds_write(wa, V(4 * q, 4), q * 4096)))
        p(waitfor(wr), barrier())

    def h_epi(self, G, U):
        out = []; self.h_writes = []
        for t in range(2):
            for nt in range(2):
                g = G.sub((t * 2 + nt) * 16, 16); u = U.sub((t * 2 + nt) * 16, 16)
                for s in range(2):
                    for i in range(8):
                        out.append(valu("v_max_f32", g[8 * s + i], 0, g[8 * s + i]))
                    for i in range(8):
                        out.append(valu("v_mul_f32", g[8 * s + i], g[8 * s + i], u[8 * s + i]))
                    for i in range(4):
                        out.append(valu("v_cvt_pk_bf16_f32", u[8 * s + i], g[8 * s + 2 * i], g[8 * s + 2 * i + 1]))
                    w = ds_write(vH[t], u.sub(8 * s, 4), (s * 2 + nt) * 1024)
                    self.h_writes.append(w); out.append(w)
        return out

    def q_epi(self, acc, ps):
        out = []
        for t in range(2):
            for nt in range(2):
                a = acc.sub((t * 2 + nt) * 16, 16)
                for s in range(2):
                    d = qfrag(ps * 4 + 2 * t + s, nt)
                    for i in range(8):
                        out.append(valu("v_mul_f32", a[8 * s + i], sCs, a[8 * s + i]))
                    for i in range(4):
                        out.append(valu("v_cvt_pk_bf16_f32", d[i], a[8 * s + 2 * i], a[8 * s + 2 * i + 1]))
        return out

    def part_epi(self, acc, ps, slab):
        out = []
        for t in range(2):
            out.append(salu("s_add_u32", sT3, slab, ps * 8192 + t * 4096))
            for nt in range(2):
                a = acc.sub((t * 2 + nt) * 16, 16)
                for s in range(2):
                    d = a.sub(8 * s, 4)
                    for i in range(4):
                        out.append(valu("v_cvt_pk_bf16_f32", d[i], a[8 * s + 2 * i], a[8 * s + 2 * i + 1]))
                    out.append(buf_store(d, vLin0, srdWS, sT3, (s * 2 + nt) * 1024))
        return out

    def o_epi(self):
        out = []; self.o_writes = []
        k = 0
        for t in range(4):
            for nt in range(2):
                for s in range(2):
                    tmp = QLO.sub(8 * (k % 4), 8); k += 1
                    src = OACC.sub((t * 2 + nt) * 16 + 8 * s, 8)
                    for i in range(8): out.append(valu("v_accvgpr_read_b32", tmp[i], src[i]))
                    for i in range(8): out.append(valu("v_mul_f32", tmp[i], tmp[i], vLinv[nt]))
                    for i in range(4): out.append(valu("v_cvt_pk_bf16_f32", tmp[i], tmp[2 * i], tmp[2 * i + 1]))
                    w = ds_write(vXn[0], tmp.sub(0, 4), ((2 * t + s) * 2 + nt) * 1024)
                    self.o_writes.append(w); out.append(w)
        return out

    def att_addr(self):
        out = []
        l, a, b, c = vT[0], vT[1], vT[2], vT[3]
        out += [valu("v_lshrrev_b32", l, 4, vLin0)]
        out += [salu("s_mul_i32", sT0, sJ, 2048 * 256), salu("s_add_u32", sT0, sT0, 1536 * 256),
                salu("s_lshl_b32", sT1, sW, 11), salu("s_add_u32", sT0, sT0, sT1)]
        out += [valu("v_lshrrev_b32", a, 4, l), valu("v_and_b32", b, 15, l), valu("v_xor_b32", b, b, a),
                valu("v_lshlrev_b32", b, 4, b), valu("v_lshlrev_b32", c, 8, a), valu("v_add3_u32", vK1, b, c, sT0),
                valu("v_add_u32", vK2, 1024, vK1), valu("v_subrev_u32", vK2, 1088, vK2)]
        out += [valu("v_bfe_u32", b, l, 2, 2), valu("v_xor_b32", b, b, a), valu("v_lshlrev_b32", b, 6, b),
                valu("v_add3_u32", vV1, b, c, sT0), valu("v_and_b32", b, 3, l), valu("v_lshlrev_b32", b, 4, b),
                valu("v_add_u32", vV1, vV1, b)]
        out += [valu("v_bfe_u32", a, l, 4, 1), valu("v_lshlrev_b32", a, 2, a),
                valu("v_bfe_u32", b, l, 2, 1), valu("v_lshlrev_b32", b, 1, b), valu("v_add_u32", a, a, b),
                valu("v_bfe_u32", b, l, 3, 1), valu("v_add_u32", a, a, b),
                valu("v_mul_u32_u24", a, 1088, a),
                valu("v_and_b32", b, 3, l), valu("v_lshlrev_b32", c, 8, b), valu("v_add_u32", a, a, c),
                valu("v_lshrrev_b32", c, 5, l), valu("v_xor_b32", c, c, b),
                valu("v_lshlrev_b32", c, 4, c), valu("v_add_u32", vKr[0], a, c), valu("v_add_u32", vKr[0], X_BASE, vKr[0]),
                valu("v_xor_b32", c, 32, c), valu("v_add_u32", vKr[1], a, c), valu("v_add_u32", vKr[1], X_BASE, vKr[1])]
        out += [valu("v_lshrrev_b32", a, 5, l), valu("v_lshlrev_b32", a, 3, a), valu("v_bfe_u32", b, l, 2, 2),
                valu("v_add_u32", a, a, b), valu("v_lshlrev_b32", a, 8, a),
                valu("v_bfe_u32", c, l, 4, 1), valu("v_lshlrev_b32", c, 5, c), valu("v_add_u32", a, a, c),
                valu("v_and_b32", c, 1, l), valu("v_lshlrev_b32", c, 4, c), valu("v_add_u32", a, a, c),
                valu("v_bfe_u32", c, l, 1, 1), valu("v_lshlrev_b32", c, 3, c), valu("v_add_u32", a, a, c),
                valu("v_add_u32", a, X_BASE + V_OFF, a), valu("v_lshlrev_b32", b, 6, b)]
        for t in range(4):
            out += [valu("v_xor_b32", c, t * 64, b), valu("v_add_u32", vVr[t], a, c)]
        out += [valu("v_mov_b32", vMf[0], 0xff800000), valu("v_mov_b32", vMf[1], 0xff800000)]
        return out

    def k_dma(self, u):
        if u > 15: return []
        o = [salu("s_add_u32", "m0", sKlds, (u % K_SLOTS) * K_SLOT), salu("s_mov_b32", sOffK, u * 8192),
             dma(vK1, srdK, sOffK, 0), dma(vK2, srdK, sOffK, 1088)]
        self.kd[u] = o[2:]
        return o
    def v_dma(self, u):
        if u > 15: return []
        o = [salu("s_add_u32", "m0", sVlds, (u % V_SLOTS) * V_SLOT), salu("s_mov_b32", sOffV, u * 8192),
             dma(vV1, srdV, sOffV, 0), dma(vV1, srdV, sOffV, 1024)]
        self.vd[u] = o[2:]
        return o
    def k_reads(self, u):
        return [ds_read(KF.sub(4 * ks, 4), vKr[ks & 1], (u % K_SLOTS) * K_SLOT + (ks >> 1) * 64) for ks in range(8)]
    def v_reads(self, u):
        out = []
        for s in range(2):
            for t in range(4):
                d = VF.sub((s * 4 + t) * 4, 4)
                off = (u % V_SLOTS) * V_SLOT + s * 4096
                out += [ds_read_tr(d.sub(0, 2), vVr[t], off), ds_read_tr(d.sub(2, 2), vVr[t], off + 1024)]
        return out
    def qk_mfmas(self, u, c0):
        sb = SB[u % 2]; out = []
        for ks in range(8):
            for nt in range(2):
                d = sb.sub(16 * nt, 16)
                c = d if ks else (c0 if c0 == 0 else c0.sub(16 * nt, 16))
                out.append(mfma(d, KF.sub(4 * ks, 4), qfrag(ks, nt), c))
        return out
    def pv_mfmas(self, u):
        out = []
        for s in range(2):
            for nt in range(2):
                for t in range(4):
                    d = OACC.sub((t * 2 + nt) * 16, 16)
                    out.append(mfma(d, VF.sub((s * 4 + t) * 4, 4), PF.sub((s * 2 + nt) * 4, 4), 0 if (u == 0 and s == 0) else d))
        return out
    def softmax_items(self, u):
        sb = SB[u % 2]; seq = []
        for f in range(4):
            s, nt = f >> 1, f & 1
            for i in range(8): seq.append((f, nt, sb[16 * nt + 8 * s + i], i))
        groups = []
        for g in range(35):
            it = []
            if g < 32:
                it.append(valu("v_exp_f32", seq[g][2], seq[g][2]))
            if 1 <= g <= 32:
                f, nt, r, i = seq[g - 1]
                acc = vL[nt * 2 + (i & 1)]
                if u == 0 and f < 2 and i < 2: it.append(valu("v_mov_b32", acc, r))
                else: it.append(valu("v_add_f32", acc, acc, r))
            if g >= 4 and g % 2 == 0:
                a = (g - 4) // 2
                f, nt, r, i = seq[2 * a]
                it.append(valu("v_cvt_pk_bf16_f32", PF[f * 4 + (i >> 1)], r, seq[2 * a + 1][2]))
            groups.append(it)
        return groups

    def att_iter(self, u, pre, tail=None):
        p = self.p
        need = []
        if u + 1 <= 15: need += self.kd[u + 1]
        need += self.vd[u]
        p(waitfor(need), barrier())
        mf = []
        if u >= 1: mf += self.pv_mfmas(u - 1)
        if u + 1 <= 15: mf += self.qk_mfmas(u + 1, NEGM)
        else: mf += self.pv_mfmas(15)
        n = len(mf)
        sm = self.softmax_items(u)
        kr = self.k_reads(u + 1) if u + 1 <= 15 else []
        vr = self.v_reads(u)
        dm = self.k_dma(u + 3) + self.v_dma(u + 2)
        gaps = [[] for _ in range(n)]
        if u == 0:
            p(kr); p(pre[:8]); p(dm)
            rest = pre[8:]
            for g in range(n):
                gaps[g] = (rest[3 * g:3 * g + 3] if g < 8 else []) + sm[2 * g] + sm[2 * g + 1] + vr[g:g + 1]
            gaps[n - 1] += sm[32] + sm[33] + sm[34]
        elif u == 15:
            for k in range(35): gaps[(k * 4) // 5] += sm[k]
            for t in range(4):
                gaps[4 + t] += vr[2 * t:2 * t + 2]
                gaps[12 + t] += vr[8 + 2 * t:8 + 2 * t + 2]
            for g, items in tail.items(): gaps[g] += items
        else:
            for k in range(35): gaps[min(k, 31)] += sm[k]
            for i, r in enumerate(kr): gaps[1 + i].append(r)
            for i, r in enumerate(vr): gaps[16 + i].append(r)
            dmi = []
            for i in range(0, len(dm), 4): dmi += [dm[i:i + 2], dm[i + 2:i + 3], dm[i + 3:i + 4]]
            for i, d in enumerate(dmi): gaps[10 + i] += d
        for g in range(n):
            p(mf[g]); p(gaps[g])

    def hload(self, s, nt):
        return ds_read(BF.sub((s % 2) * 8 + nt * 4, 4), vLin0, H_BASE + (s * 2 + nt) * 1024)
    def oload(self, s, nt):
        return ds_read(BF.sub((s % 2) * 8 + nt * 4, 4), vLinX, (s * 2 + nt) * 1024)

    def fallback(self):
        p = self.p
        p(label("L_fallback"))
        p(drain(), barrier())
        p(salu("s_mov_b32", sFb, 1))
        for nt in range(2): p(valu("v_mov_b32", vMf[nt], 0xff800000))
        p(salu("s_mov_b32", sT2, 0))
        p(label("L_fb_loop"))
        d = [dma(vK1, srdK, sT2, 0), dma(vK2, srdK, sT2, 1088)]
        p(salu("s_mov_b32", "m0", sKlds), nop(0), d)
        p(drain(), barrier())
        p([ds_read(KF.sub(4 * ks, 4), vKr[ks & 1], (ks >> 1) * 64) for ks in range(8)])
        p(self.qk_mfmas(0, 0))
        for nt in range(2):
            r = SB[0].sub(16 * nt, 16)
            for i in range(0, 16, 2): p(valu("v_max3_f32", vMf[nt], vMf[nt], r[i], r[i + 1]))
        for nt in range(2):
            p(valu("v_mov_b32", vT[2 + nt], vMf[nt]))
        for nt in range(2):
            p(valu("v_permlane32_swap_b32", vMf[nt], vT[2 + nt]))
        for nt in range(2):
            p(valu("v_max_f32", vMf[nt], vMf[nt], vT[2 + nt]))
        p(drain(), barrier())
        p(salu("s_add_u32", sT2, sT2, 8192), salu("s_cmp_lt_u32", sT2, 16 * 8192), raw("s_cbranch_scc1 L_fb_loop", "branch"))
        for u in range(3): p(self.k_dma(u))
        for u in range(2): p(self.v_dma(u))
        p(drain(), barrier())
        p(self.k_reads(0))
        p(drain())
        p(raw("s_branch L_att", "branch"))

    def main(self):
        p = self.p
        self.build_stream()
        self.kd, self.vd = {}, {}
        self.prologue()
        p(self.stamp())
        self.layernorm()
        p(self.stamp())
        self.dump_lds("xn", X_BASE, 65536, 0)
        xn = lambda s, nt: A((s * 2 + nt) * 4, 4)
        xload = lambda s, nt: ds_read(xn(s, nt), vXn[s & 1], s * 2048 + nt * 1024)
        p(self.read_slab(0, 0), xload(0, 0), xload(0, 1), self.read_slab(0, 1))
        self.gemm_pass(0, 32, ACC[0], xn, bload=xload)
        p(self.stamp())
        self.gemm_pass(32, 32, ACC[1], xn)
        p(self.stamp())
        self.dump("G", ACC[0], 1); self.dump("U", ACC[1], 2)
        self.bg.extend(self.h_epi(ACC[0], ACC[1]))
        self.gemm_pass(64, 32, ACC[2], xn, bg_start=4, cap=5)
        self.flush_bg()
        p(waitfor(self.h_writes), barrier())
        p(self.stamp())
        self.dump_lds("h", H_BASE, 28672, 3)
        self.bg.extend(self.q_epi(ACC[2], 0))
        self.bg.extend(self.att_addr())
        def extraQ1(s):
            g = [[], [], [], []]
            if s == 14:
                assert not self.bg
                g[2] = self.k_dma(0)
            if s == 15: g[2] = self.v_dma(0)
            if s == 16: g[2] = self.k_dma(1)
            if s == 17: g[2] = self.v_dma(1)
            if s == 18: g[2] = self.k_dma(2)
            if s == 27: g[2] = [waitfor(self.kd[0]), barrier()]
            if s >= 28:
                kr = self.k0_reads
                g[2] = kr[2 * (s - 28):2 * (s - 28) + 2]
            return g
        self.k0_reads = self.k_reads(0)
        self.gemm_pass(96, 32, ACC[0], xn, extra=extraQ1, bg_start=4, cap=6, next_reads=False)
        assert not self.bg
        p(self.stamp())
        qk0 = self.qk_mfmas(0, 0)
        qe = self.q_epi(ACC[0], 1)
        p(qk0[0], qk0[1], qk0[2], qk0[3])
        for i in range(4):
            p(qe[24 * i:24 * (i + 1)])
            p(qk0[4 + i])
        p(qk0[8:])
        self.dump("Q", QLO, 4); self.dump("Q1", V(0, 32), 5)
        p(raw("s_branch L_att_go", "branch"))
        p(label("L_att"))
        p(self.qk_mfmas(0, 0))
        p(label("L_att_go"))
        p(nop(11))
        self.attention_body()
        p(self.stamp())
        self.dump("O", OACC, 6); self.dump("L", V(254, 2), 7)
        p(salu("s_lshl_b32", sT0, sW, 14), valu("v_add_u32", vXn[0], sT0, vLinX))
        hb = lambda s, nt: BF.sub((s % 2) * 8 + nt * 4, 4)
        self.bg.extend(self.o_epi())
        self.gemm_pass(128, 14, ACC[1], hb, bload=self.hload, bg_start=3, cap=9, next_reads=True)
        p(self.hload(0, 0), self.hload(0, 1))
        self.gemm_pass(142, 14, ACC[2], hb, bload=self.hload, bg_start=0, cap=9, next_reads=True)
        self.flush_bg()
        p(waitfor(self.o_writes), barrier())
        p(self.stamp())
        self.dump_lds("Ofr", X_BASE, 65536, 8)
        p(self.oload(0, 0), self.oload(0, 1))
        self.bg.extend(self.part_epi(ACC[1], 0, sBslab))
        self.bg.extend(self.part_epi(ACC[2], 1, sBslab))
        self.gemm_pass(156, 32, ACC[0], hb, bload=self.oload, bg_start=4, cap=5)
        self.flush_bg()
        p(self.stamp())
        p(self.oload(0, 0), self.oload(0, 1))
        self.bg.extend(self.part_epi(ACC[0], 0, sSslab))
        self.gemm_pass(188, 32, ACC[1], hb, bload=self.oload, bg_start=4, cap=5, next_reads=False)
        self.flush_bg()
        p(self.stamp())
        p(self.part_epi(ACC[1], 1, sSslab))
        p(drain())
        p(self.stamp())
        if self.stamps:
            p(raw("s_waitcnt lgkmcnt(0)"))
            for k in range(self.nstamp):
                p(raw(f"v_writelane_b32 v0, s{STAMP0+2*k}, {k}", "valu", wr=["v0"]))
            p(salu("s_lshl_b32", sT0, S(2), 2), salu("s_add_u32", sT0, sT0, sW), salu("s_lshl_b32", sT0, sT0, 8),
              salu("s_add_u32", sT0, sT0, WS_STAMP))
            p(valu("v_lshrrev_b32", V(1), 2, vLin0))
            p(buf_store(V(0), V(1), srdWS, sT0))
            p(drain())
        p(label("L_end"), raw("s_endpgm", "end"))
        self.fallback()

    def attention_body(self):
        p = self.p
        sb = SB[0]
        m = [vT[0], vT[1]]; tt = [vT[2], vT[3]]
        for nt in range(2):
            r = sb.sub(16 * nt, 16)
            p(valu("v_max3_f32", m[nt], r[0], r[1], r[2]))
            for i in range(3, 15, 2): p(valu("v_max3_f32", m[nt], m[nt], r[i], r[i + 1]))
            p(valu("v_max_f32", m[nt], m[nt], r[15]))
        for nt in range(2): p(valu("v_mov_b32", tt[nt], m[nt]))
        for nt in range(2): p(valu("v_permlane32_swap_b32", m[nt], tt[nt]))
        for nt in range(2): p(valu("v_max3_f32", m[nt], m[nt], tt[nt], vMf[nt]))
        for nt in range(2): p(valu("v_sub_f32", NEGM[16 * nt], 0, m[nt]))
        for i in range(1, 16):
            for nt in range(2): p(valu("v_mov_b32", NEGM[16 * nt + i], NEGM[16 * nt]))
        pre0 = [valu("v_add_f32", sb[16 * nt + 8 * s + i], sb[16 * nt + 8 * s + i], NEGM[16 * nt])
                for s in range(2) for nt in range(2) for i in range(8)]
        for u in range(15):
            self.att_iter(u, pre0 if u == 0 else [])
        l = [vT[0], vT[1]]; tt = [vT[2], vT[3]]
        fin = []
        for nt in range(2): fin.append(valu("v_add_f32", l[nt], vL[2 * nt], vL[2 * nt + 1]))
        for nt in range(2): fin.append(valu("v_mov_b32", tt[nt], l[nt]))
        fin.append(salu("s_lshl_b32", sT1, sW, 2)); fin.append(salu("s_add_u32", sT1, sT1, MISC))
        for nt in range(2): fin.append(valu("v_permlane32_swap_b32", l[nt], tt[nt]))
        fin.append(valu("v_mov_b32", vT[5], sT1))
        for nt in range(2): fin.append(valu("v_add_f32", l[nt], l[nt], tt[nt]))
        fin.append(valu("v_max_f32", tt[0], l[0], l[1]))
        fin.append(valu("v_cmp_nge_f32", "vcc", sThr, tt[0]))
        for nt in range(2): fin.append(valu("v_rcp_f32", vLinv[nt], l[nt]))
        fin2 = [salu("s_cmp_lg_u64", "vcc", 0), salu("s_cselect_b32", sT0, 1, 0), valu("v_mov_b32", vT[4], sT0)]
        fin2.append(ds_write(vT[5], vT[4], 0))
        fin3 = [valu("v_mov_b32", vT[5], MISC), drain(vm=False), barrier(), ds_read(V(156, 4), vT[5], 0)]
        extra = self.read_slab(128, 0) + self.read_slab(128, 1) + [self.hload(0, 0), self.hload(0, 1)]
        self.att_iter(15, [], tail={26: fin[:8], 27: fin[8:], 28: fin2, 29: fin3, 30: extra[:3], 31: extra[3:]})
        p(valu("v_or3_b32", V(156), V(156), V(157), V(158)), valu("v_or_b32", V(156), V(156), V(159)))
        p(valu("v_readfirstlane_b32", sT0, V(156)))
        p(salu("s_cmp_gt_u32", sT0, sFb), raw("s_cbranch_scc1 L_fallback", "branch"))

    def reduce_kernel(self):
        p = Prog()
        s2 = S(2)
        p(salu("s_cmp_ge_u32", s2, 256), raw("s_cbranch_scc1 L_rend", "branch"))
        p(raw("s_load_dwordx2 s[4:5], s[0:1], 0", "smem"), raw("s_load_dwordx2 s[6:7], s[0:1], 72", "smem"),
          raw("s_load_dwordx2 s[8:9], s[0:1], 88", "smem"))
        lane, t0, t1 = V(200), V(201), V(202)
        sw, sjr, stb = S(10), S(11), S(24)
        p(valu("v_lshrrev_b32", t0, 6, V(0)), valu("v_and_b32", lane, 63, V(0)), valu("v_readfirstlane_b32", sw, t0))
        p(salu("s_and_b32", sjr, s2, 7), salu("s_lshr_b32", stb, s2, 3))
        p(raw("s_waitcnt lgkmcnt(0)"))
        sx, so, sw_ = S(12, 4), S(16, 4), S(20, 4)
        for dst, src, n in ((sx, 4, 2 << 20), (so, 6, 2 << 20), (sw_, 8, 1 << 28)):
            p(salu("s_mov_b32", dst[0], S(src)), salu("s_mov_b32", dst[1], S(src + 1)),
              salu("s_mov_b32", dst[2], n), salu("s_mov_b32", dst[3], 0x20000))
        scb, sb0, st = S(25), S(26), S(27)
        p(salu("s_lshl_b32", scb, sjr, 2), salu("s_add_u32", scb, scb, sw))
        p(salu("s_lshl_b32", sb0, stb, 19), salu("s_lshl_b32", st, scb, 11), salu("s_add_u32", sb0, sb0, st))
        vl = V(203)
        p(valu("v_lshlrev_b32", vl, 4, lane))
        vx = V(204)
        p(valu("v_and_b32", t0, 31, lane), valu("v_lshlrev_b32", t0, 10, t0), valu("v_lshrrev_b32", t1, 5, lane),
          valu("v_lshlrev_b32", t1, 4, t1))
        p(salu("s_lshl_b32", st, stb, 16), salu("s_lshl_b32", S(28), scb, 5), salu("s_add_u32", st, st, S(28)))
        p(valu("v_add3_u32", vx, t0, t1, st))
        for nt in range(2):
            for wh, base in enumerate((WS_B, WS_S)):
                for j in range(8):
                    p(salu("s_add_u32", st, sb0, base + j * 65536 + nt * 1024))
                    p(buf_load(V(((nt * 2 + wh) * 8 + j) * 4, 4), vl, sw_, st))
        xr = [V(128, 4), V(132, 4)]
        p(buf_load(xr[0], vx, sx, 0, 0))
        p(salu("s_mov_b32", st, 32768), buf_load(xr[1], vx, sx, st, 0))
        slo, shi = S(30), S(31)
        p(salu("s_mov_b32", slo, 0x00003f80), salu("s_mov_b32", shi, 0x3f800000), salu("s_mov_b32", S(29), f2u(-1.4426950408889634)))
        for nt in range(2):
            acc = [V(136, 8), V(144, 8)]
            for wh in range(2):
                for j in range(8):
                    src = V(((nt * 2 + wh) * 8 + j) * 4, 4)
                    for i in range(4):
                        p(valu("v_dot2_f32_bf16", acc[wh][2 * i], src[i], slo, 0 if j == 0 else acc[wh][2 * i]))
                        p(valu("v_dot2_f32_bf16", acc[wh][2 * i + 1], src[i], shi, 0 if j == 0 else acc[wh][2 * i + 1]))
            Bv, Sv = acc
            e = V(152, 8); xf = V(160, 8)
            for i in range(8): p(valu("v_mul_f32", e[i], S(29), Bv[i]))
            for i in range(8): p(valu("v_exp_f32", e[i], e[i]))
            for i in range(8): p(valu("v_add_f32", e[i], 1.0, e[i]))
            for i in range(8): p(valu("v_rcp_f32", e[i], e[i]))
            for i in range(4):
                p(valu("v_lshlrev_b32", xf[2 * i], 16, xr[nt][i]), valu("v_and_b32", xf[2 * i + 1], 0xffff0000, xr[nt][i]))
            for i in range(8): p(valu("v_mul_f32", e[i], e[i], Bv[i]))
            for i in range(8): p(valu("v_fma_f32", e[i], e[i], Sv[i], xf[i]))
            o = V(168 + 4 * nt, 4)
            for i in range(4): p(valu("v_cvt_pk_bf16_f32", o[i], e[2 * i], e[2 * i + 1]))
            p(salu("s_mov_b32", st, 32768 * nt), buf_store(o, vx, so, st, 0))
        p(drain())
        p(label("L_rend"), raw("s_endpgm", "end"))
        return p

def kd(name, vgpr, accum, sgpr=102):
    return f""".amdhsa_kernel {name}
  .amdhsa_next_free_vgpr {vgpr}
  .amdhsa_next_free_sgpr {sgpr}
  .amdhsa_accum_offset {accum}
  .amdhsa_group_segment_fixed_size 0
  .amdhsa_kernarg_size 96
  .amdhsa_user_sgpr_count 2
  .amdhsa_user_sgpr_kernarg_segment_ptr 1
  .amdhsa_system_sgpr_workgroup_id_x 1
.end_amdhsa_kernel
"""

def build(stamps=False, dumps=()):
    g = Gen(stamps, dumps)
    g.main()
    l1, st1 = g.p.finalize()
    l2, st2 = g.reduce_kernel().finalize()
    hdr = open("cdna_kernels/" + NAME + ".s.ref").read().split("; Override launch")[0]
    k1, k2 = NAME + "_kernel", "reduce_partials_kernel"
    s = hdr
    s += f"; @launch kernel={k1} grid=(256,1,1) block=(256,1,1) lds={LDS_BYTES}\n"
    s += f"; @launch kernel={k2} grid=(256,1,1) block=(256,1,1) lds=0\n"
    s += '.amdgcn_target "amdgcn-amd-amdhsa--gfx950"\n.text\n'
    for k, l in ((k1, l1), (k2, l2)):
        s += f".globl {k}\n.p2align 8\n.type {k},@function\n{k}:\n" + "\n".join(l) + "\n"
    s += '.section .rodata,"a"\n.p2align 6\n' + kd(k1, 512, 256) + ".p2align 6\n" + kd(k2, 208, 208, 40)
    return s, (len(l1), st1, len(l2), st2)

if __name__ == "__main__":
    import argparse
    ap = argparse.ArgumentParser()
    ap.add_argument("-o", default="cdna_kernels/" + NAME + ".s")
    ap.add_argument("--stamps", action="store_true")
    ap.add_argument("--dumps", default="")
    a = ap.parse_args()
    s, info = build(a.stamps, [d for d in a.dumps.split(",") if d])
    open(a.o, "w").write(s)
    print(info, len(s), "bytes")
```

```python
class R:
    __slots__ = ("t", "n", "c")
    def __init__(self, t, n, c=1):
        self.t, self.n, self.c = t, n, c
    def __str__(self):
        return f"{self.t}{self.n}" if self.c == 1 else f"{self.t}[{self.n}:{self.n+self.c-1}]"
    def regs(self):
        return [f"{self.t}{i}" for i in range(self.n, self.n + self.c)]
    def sub(self, off, c=1):
        assert 0 <= off and off + c <= self.c, (str(self), off, c)
        return R(self.t, self.n + off, c)
    def __getitem__(self, i):
        return self.sub(i, 1)

def V(n, c=1):
    assert 0 <= n and n + c <= 256, (n, c)
    return R("v", n, c)
def A(n, c=1):
    assert 0 <= n and n + c <= 256, (n, c)
    return R("a", n, c)
def S(n, c=1):
    assert 0 <= n and n + c <= 102, (n, c)
    return R("s", n, c)

SPECIAL = {"vcc": ["vcc"], "exec": ["exec"], "m0": ["m0"], "scc": ["scc"]}

def regs_of(x):
    if isinstance(x, R): return x.regs()
    if isinstance(x, str):
        y = x.lstrip("-")
        if y in SPECIAL: return SPECIAL[y]
    if isinstance(x, Neg): return regs_of(x.x)
    return []

class Neg:
    def __init__(self, x): self.x = x
    def __str__(self): return "-" + str(self.x)

def fmt(x):
    if isinstance(x, bool): raise ValueError
    if isinstance(x, int):
        if -16 <= x <= 64: return str(x)
        return hex(x & 0xffffffff)
    if isinstance(x, float):
        return {0.5: "0.5", 1.0: "1.0", 2.0: "2.0", 4.0: "4.0", -0.5: "-0.5", -1.0: "-1.0", -2.0: "-2.0", -4.0: "-4.0"}[x]
    return str(x)

TRANS = {"v_exp_f32", "v_rcp_f32", "v_rsq_f32", "v_log_f32", "v_sqrt_f32"}
RMW = {"v_fmac_f32", "v_dot2c_f32_bf16"}

class I:
    __slots__ = ("text", "kind", "rd", "wr", "srcc", "passes", "after", "cost", "tag", "wide", "n", "optional")
    def __init__(self, text, kind, rd=(), wr=(), cost=1):
        self.text, self.kind = text, kind
        self.rd, self.wr = set(rd), set(wr)
        self.srcc = set(); self.passes = 0; self.after = []; self.cost = cost
        self.tag = None; self.wide = set(); self.n = 0; self.optional = False
    def dep(self, *ops):
        for o in ops:
            if o is None: continue
            if isinstance(o, (list, tuple)): self.dep(*o)
            else: self.after.append(o)
        return self

def valu(op, dst, *srcs, mods=""):
    rd = [r for s in srcs for r in regs_of(s)]
    wr = regs_of(dst)
    base = op.replace("_e32", "").replace("_e64", "").replace("_dpp", "")
    if base in RMW: rd += wr
    kind = "trans" if base in TRANS else "valu"
    if base.startswith("v_permlane"):
        rd += wr; wr = wr + [r for s in srcs for r in regs_of(s)]; kind = "permlane"
    if base.startswith("v_readfirstlane") or base.startswith("v_readlane"): kind = "readlane"
    if op.endswith("_dpp"): kind = "dpp"
    if base.startswith("v_cndmask") and len(srcs) == 2: rd += ["vcc"]
    t = f"{op} {fmt(dst)}" + "".join(", " + fmt(s) for s in srcs) + (" " + mods if mods else "")
    return I(t, kind, rd, wr, cost=2 if kind == "trans" else 1)

def salu(op, dst, *srcs):
    rd = [r for s in srcs for r in regs_of(s)]
    wr = regs_of(dst)
    if op.startswith("s_cmp"):
        rd += wr; wr = ["scc"]
    if op in ("s_addc_u32", "s_cselect_b32", "s_cselect_b64"): rd += ["scc"]
    t = f"{op} {fmt(dst)}" + "".join(", " + fmt(s) for s in srcs)
    return I(t, "salu", rd, wr)

def mfma(d, a, b, c, shape="32x32x16"):
    passes = 8 if shape == "32x32x16" else 4
    t = f"v_mfma_f32_{shape}_bf16 {d}, {a}, {b}, {fmt(c)}"
    i = I(t, "mfma", regs_of(a) + regs_of(b) + regs_of(c), regs_of(d), cost=2)
    i.srcc = set(regs_of(c)); i.passes = passes
    return i

def ds_read(dst, addr, off=0, op=None):
    op = op or {1: "ds_read_b32", 2: "ds_read_b64", 4: "ds_read_b128"}[dst.c]
    assert 0 <= off < 65536, off
    t = f"{op} {dst}, {addr}" + (f" offset:{off}" if off else "")
    return I(t, "ds_rd", regs_of(addr), regs_of(dst))

def ds_read_tr(dst, addr, off=0):
    return ds_read(dst, addr, off, "ds_read_b64_tr_b16")

def ds_write(addr, data, off=0):
    op = {1: "ds_write_b32", 2: "ds_write_b64", 4: "ds_write_b128"}[data.c]
    assert 0 <= off < 65536, off
    t = f"{op} {addr}, {data}" + (f" offset:{off}" if off else "")
    i = I(t, "ds_wr", regs_of(addr) + regs_of(data), [], cost=3 if data.c == 4 else 1)
    if data.c >= 3: i.wide = set(regs_of(data))
    return i

def _buf(op, data, voff, srd, soff, off, mods):
    assert 0 <= off < 4096, off
    s = f"{op} " + (f"{data}, " if data is not None else "") + f"{voff}, {srd}, {fmt(soff)} offen"
    if off: s += f" offset:{off}"
    if mods: s += " " + mods
    return s

def buf_load(dst, voff, srd, soff=0, off=0, mods=""):
    op = {1: "buffer_load_dword", 2: "buffer_load_dwordx2", 4: "buffer_load_dwordx4"}[dst.c]
    return I(_buf(op, dst, voff, srd, soff, off, mods), "vload", regs_of(voff) + regs_of(srd) + regs_of(soff), regs_of(dst))

def buf_store(data, voff, srd, soff=0, off=0, mods=""):
    op = {1: "buffer_store_dword", 2: "buffer_store_dwordx2", 4: "buffer_store_dwordx4"}[data.c]
    i = I(_buf(op, data, voff, srd, soff, off, mods), "vstore", regs_of(voff) + regs_of(srd) + regs_of(soff) + regs_of(data), [])
    if data.c >= 3: i.wide = set(regs_of(data))
    return i

def dma(voff, srd, soff=0, off=0, mods=""):
    m = (mods + " " if mods else "") + "lds"
    s = _buf("buffer_load_dwordx4", None, voff, srd, soff, off, "")
    s += " " + m
    return I(s, "dma", regs_of(voff) + regs_of(srd) + regs_of(soff) + ["m0"], [])

def raw(text, kind="other", rd=(), wr=()):
    return I(text, kind, rd, wr)

def label(name): return I(name + ":", "label")
def barrier(): return I("s_barrier", "barrier")
def waitfor(*ops):
    return I("", "pseudo").dep(*ops)
def drain(vm=True, lgkm=True):
    i = I("", "drain"); i.tag = (vm, lgkm); return i
def nop(n): return I(f"s_nop {n}", "nop")
def side_begin():
    return I("", "push")
def side_end():
    return I("", "pop")

VM = ("vload", "vstore", "dma", "vatomic")
DS = ("ds_rd", "ds_wr")
VALUISH = ("valu", "trans", "permlane", "readlane", "dpp")

class Prog:
    def __init__(self):
        self.ins = []
    def __call__(self, *xs):
        for x in xs:
            if x is None: continue
            if isinstance(x, (list, tuple)): self(*x)
            else: self.ins.append(x)
        return xs[-1] if xs else None

    def finalize(self):
        out = []
        hist = []
        pos = 0
        vmq, dsq = [], []
        pend_vm, pend_ds = {}, {}
        stats = {"nop": 0, "wait": 0}
        def emit(text, i=None, states=1):
            nonlocal pos
            out.append(text)
            if i is not None: hist.append((i, pos))
            pos += states
            if len(hist) > 40: del hist[:len(hist) - 40]
        def do_wait(vm_n, ds_n):
            parts = []
            if vm_n is not None:
                keep = vmq[len(vmq) - vm_n:] if vm_n else []
                cnt = min(sum(1 for o in keep if not o.optional), 63)
                parts.append(f"vmcnt({cnt})")
                done = vmq[:len(vmq) - vm_n]; del vmq[:len(vmq) - vm_n]
                for o in done:
                    for r in o.wr:
                        if pend_vm.get(r) is o: del pend_vm[r]
            if ds_n is not None:
                ds_n = min(ds_n, 15)
                parts.append(f"lgkmcnt({ds_n})")
                k = max(len(dsq) - ds_n, 0)
                done = dsq[:k]; del dsq[:k]
                for o in done:
                    for r in o.wr:
                        if pend_ds.get(r) is o: del pend_ds[r]
            emit("s_waitcnt " + " ".join(parts)); stats["wait"] += 1
        saved = []
        for i in self.ins:
            if i.kind == "push":
                saved.append((list(vmq), list(dsq), dict(pend_vm), dict(pend_ds))); continue
            if i.kind == "pop":
                a_, b_, c_, d_ = saved.pop()
                vmq[:] = a_; dsq[:] = b_; pend_vm.clear(); pend_vm.update(c_); pend_ds.clear(); pend_ds.update(d_)
                continue
            if i.kind == "drain":
                vm, lg = i.tag
                do_wait(0 if vm else None, 0 if lg else None)
                continue
            need_vm, need_ds = [], []
            touched = i.rd | i.wr
            for r in touched:
                if r in pend_vm: need_vm.append(pend_vm[r])
                if r in pend_ds: need_ds.append(pend_ds[r])
            for o in i.after:
                if o.kind in VM: need_vm.append(o)
                elif o.kind in DS: need_ds.append(o)
                else: raise ValueError(o.text)
            vm_n = ds_n = None
            idx = [vmq.index(o) for o in need_vm if o in vmq]
            if idx: vm_n = len(vmq) - 1 - max(idx)
            idx = [dsq.index(o) for o in need_ds if o in dsq]
            if idx: ds_n = len(dsq) - 1 - max(idx)
            if vm_n is not None or ds_n is not None:
                do_wait(vm_n, ds_n)
            if i.kind == "pseudo": continue
            need = 0
            for (p, ppos) in hist:
                d = pos - ppos - 1
                req = hazard(p, i)
                if req > d: need = max(need, req - d)
            while need > 0:
                n = min(need, 16)
                emit(f"s_nop {n-1}", None, n); stats["nop"] += n
                need -= n
            if len(vmq) >= 62 and i.kind in VM:
                do_wait(58, None)
            states = 1
            if i.kind == "nop": states = int(i.text.split()[1]) + 1
            emit(i.text, i, states)
            if i.kind in VM:
                vmq.append(i)
                for r in i.wr: pend_vm[r] = i
            elif i.kind in DS:
                dsq.append(i)
                for r in i.wr: pend_ds[r] = i
                if len(dsq) > 64:
                    pass
        return out, stats

def is_sgpr(r): return r[0] == "s" and r != "scc" or r == "vcc"
def is_vgpr(r): return r[0] in "va" and r != "vcc"

def hazard(p, c):
    req = 0
    pk, ck = p.kind, c.kind
    pw_v = {r for r in p.wr if is_vgpr(r)}
    if pk in VALUISH:
        if ck == "mfma" and pw_v & c.rd: req = max(req, 2)
        if ck == "readlane" and pw_v & c.rd: req = max(req, 1)
        if ck in ("permlane", "dpp") and pw_v & c.rd: req = max(req, 2)
        if pk == "trans" and ck in VALUISH and ck != "trans" and pw_v & c.rd: req = max(req, 1)
        if pk == "trans" and ck in DS + VM and pw_v & c.rd: req = max(req, 1)
        pw_s = {r for r in p.wr if is_sgpr(r)}
        if pw_s & c.rd:
            if ck in VM: req = max(req, 5)
            elif ck in VALUISH or ck == "mfma": req = max(req, 2)
            elif ck == "salu": req = max(req, 1)
    if pk in VALUISH and p.text.startswith("v_dot2"):
        same = c.text.split()[0] == p.text.split()[0]
        if pw_v & (c.rd | c.wr):
            if not same: req = max(req, 3)
            else:
                ops = [o.strip() for o in c.text.split(None, 1)[1].split(",")]
                if any(o in pw_v for o in ops[1:3]): req = max(req, 3)
    if pk == "mfma":
        n = p.passes
        raw_n = {2: 5, 4: 8, 8: 12, 16: 20}[n]
        if ck == "mfma":
            if p.wr & c.srcc:
                if not (p.wr == c.srcc and p.passes == c.passes): req = max(req, {2: 4, 4: 6, 8: 10, 16: 18}[n])
            if p.wr & (c.rd - c.srcc): req = max(req, raw_n)
            if p.wr & c.wr and not (p.wr == c.wr and p.wr == c.srcc):
                if not (p.wr & c.srcc): req = max(req, {2: 4, 4: 6, 8: 10, 16: 18}[n])
        elif ck in VALUISH or ck in DS or ck in VM:
            if p.wr & (c.rd | c.wr): req = max(req, raw_n)
        if ck in VALUISH and (p.srcc - p.wr) & c.wr: req = max(req, {2: 1, 4: 3, 8: 7, 16: 15}[n])
        if ck in ("ds_rd", "vload") and (p.srcc - p.wr) & c.wr: req = max(req, {2: 1, 4: 3, 8: 7, 16: 15}[n])
    if pk == "salu" and "m0" in p.wr and ck == "dma": req = max(req, 1)
    if pk == "salu" and "exec" in p.wr and ck in ("permlane", "dpp", "readlane"): req = max(req, 1)
    if p.wide and ck in VALUISH and p.wide & c.wr: req = max(req, 2)
    if p.wide and ck in ("ds_rd", "vload", "mfma") and p.wide & c.wr: req = max(req, 1)
    return req
```

```python
import sys, struct, collections
from asmgen import *

NAME = "recurrent_scan__sliding_block_cached__glu_gated_reglu__prompt"

def f2u(x): return struct.unpack("<I", struct.pack("<f", x))[0]

H_BASE = 0
X_BASE = 28672
W_BASE = 94208
MISC = 159744
LDS_BYTES = 163840
K_SLOT = 8704; K_SLOTS = 3
V_OFF = K_SLOT * K_SLOTS; V_SLOT = 8192; V_SLOTS = 4
SLAB = 2048

WS_B = 0
WS_S = 16 << 20
WS_FLAG = 48 << 20
WS_DUMP = 64 << 20
WS_STAMP = 128 << 20
OOB = 0x7ff00000

sJ, sTB, sW = S(3), S(4), S(5)
srdX, srdQ, srdO, srdG, srdU, srdD, srdK, srdV, srdWS = (S(8 + 4 * i, 4) for i in range(9))
srdP = S(44, 4)
sRing, sOff, sOffK, sOffV = S(48), S(49), S(50), S(51)
sKlds, sVlds = S(52), S(53)
sDbase, sPbase = S(54), S(55)
sBslab, sSslab = S(56), S(57)
sCs, sThr, sFb, sOnes = S(58), S(59), S(60), S(61)
sT0, sT1, sT2, sT3 = S(62), S(63), S(6), S(7)
srdOut, srdDbg = S(64, 4), S(68, 4)
STAMP0 = 72
sRingH = S(96)
sFrag = S(97)
sPblk = [S(20 + i) for i in range(4)]
sOblk = [S(24 + i) for i in range(4)]

ACC = [V(0, 64), V(64, 64), V(128, 64)]
QLO = V(192, 32)
AF = V(224, 16)
vGU1, vGU2, vQ1, vQ2, vDP1, vDP2 = (V(240 + i) for i in range(6))
vTr = [V(246), V(247)]
vLin0, vLinX = V(248), V(249)
vXn = [V(250), V(251)]
vOb = [V(250), V(251)]
vTrX = [V(250), V(251)]
vTrH1 = [V(254), V(255)]
vTrH2 = [V(240), V(241)]
vH = [V(252), V(253)]
vFlag = V(252)
vLinv = [V(254), V(255)]
SB = [V(64, 32), V(96, 32)]
PF = V(128, 16)
NEGM = V(144, 32)
vL = V(176, 4)
vT = V(180, 10)
vKr = [V(32), V(33)]
vVr = [V(34 + i) for i in range(4)]
vK1, vK2, vV1 = V(38), V(39), V(40)
vMf = V(41, 2)
vA = V(44, 8)
OACC = A(0, 128)
KF = A(128, 32)
VF = A(160, 32)
BF = A(192, 16)
BPK = [[A(208, 16), A(224, 16)], [A(240, 16), A(192, 16)]]
BF2 = A(128, 16)
BIN = [[A(192 + (ps * 8 + j) * 4, 4) for j in range(8)] for ps in range(2)]
vStart, vStartOff, vBfl, vFlOff, vX = V(52), V(53), V(54), V(55), V(56)

def qfrag(ks, nt):
    if ks < 4: return QLO.sub((ks * 2 + nt) * 4, 4)
    return V(((ks - 4) * 2 + nt) * 4, 4)

G0, U0, Q00, Q10, D00, D10, P00, P10 = 0, 32, 64, 96, 128, 142, 156, 188


class Gen:
    MEM = ("ds_rd", "ds_wr", "dma", "vload", "vstore")

    def __init__(self, stamps=False, dumps=(), **opt):
        self.opt = opt
        self.p = Prog()
        self.stamps = stamps
        self.dumps = set(dumps)
        self.nstamp = 0
        self.slabs = []
        self.slab_dma = {}
        self.slab_rd = {}
        self.bg = collections.deque()
        self.kd, self.vd = {}, {}

    def o(self, name, default):
        return type(default)(self.opt.get(name, default))

    def stamp(self, where="phase"):
        mode = self.o("stampmode", "phase"); op = "s_memtime"
        if mode == "rt": mode = "phase"; op = "s_memrealtime"
        if not self.stamps or mode != where: return []
        k = self.nstamp; self.nstamp += 1
        if k >= 12: return []
        return [raw(f"{op} s[{STAMP0+2*k}:{STAMP0+2*k+1}]", "other")]

    def dump_lds(self, name, base, nbytes, region):
        if name not in self.dumps: return
        p = self.p
        p(drain(), barrier())
        q = nbytes // 4
        p(salu("s_mul_i32", sT0, S(2), 65536), salu("s_add_u32", sT0, sT0, WS_DUMP + region * (16 << 20)))
        p(salu("s_mul_i32", sT1, sW, q), salu("s_add_u32", sT0, sT0, sT1), salu("s_add_u32", sT1, sT1, base))
        p(valu("v_add_u32", V(238), sT1, vLin0))
        for i in range(q // 1024):
            p(ds_read(V(232, 4), V(238), i * 1024))
            p(salu("s_add_u32", sT2, sT0, i * 1024))
            p(buf_store(V(232, 4), vLin0, srdWS, sT2))
            p(drain())
        p(barrier())

    def build_stream(self):
        sl = []
        for s in range(32): sl.append((srdG, vGU1, vGU2, None, s * 16 * 3584))
        for s in range(32): sl.append((srdU, vGU1, vGU2, None, s * 16 * 3584))
        for ps in range(2):
            for s in range(32): sl.append((srdQ, vQ1, vQ2, None, s * 16 * 8192 + ps * 128))
        for ps in range(2):
            for s in range(14): sl.append((srdD, vDP1, vDP2, sDbase, s * 16384 + ps * 128))
        for ps in range(2):
            for s in range(32): sl.append((srdO, vDP1, vDP2, sPblk[s >> 3], (s & 7) * 16384 + ps * 128))
        self.slabs = sl

    def init_slots(self):
        self.free = [("W", i) for i in range(8)]
        self.slot_of = {}
        self.slot_rd = {}
        self.next_slab = 0
        self.allow = {"W": lambda idx: True, "H": lambda idx: False, "X": lambda idx: False}

    def add_slots(self, region, n, allow):
        self.free += [(region, i) for i in range(n)]
        self.allow[region] = allow

    def can_issue(self):
        idx = self.next_slab
        if idx >= len(self.slabs): return None
        for sl in self.free:
            if self.allow[sl[0]](idx): return sl
        return None

    def issue_next(self, split=False):
        sl = self.can_issue()
        if sl is None: return ([], []) if split else []
        idx = self.next_slab; self.next_slab += 1
        self.free.remove(sl); self.slot_of[idx] = sl
        srd, v1, v2, base, imm = self.slabs[idx]
        reg, i = sl
        if reg == "W": out = [salu("s_add_u32", "m0", sRing, i * SLAB)]
        elif reg == "X": out = [salu("s_add_u32", "m0", sRing, (X_BASE - W_BASE + i * SLAB) & 0xffffffff)]
        else: out = [salu("s_add_u32", "m0", sRingH, i * SLAB)]
        if base is None: out.append(salu("s_mov_b32", sOff, imm))
        else: out.append(salu("s_add_u32", sOff, base, imm))
        dm_ = self.o("dmamod", "").replace("+", " ")
        d1 = dma(v1, srd, sOff, 0, dm_); d2 = dma(v2, srd, sOff, 1024, dm_)
        prev = self.slot_rd.get(sl)
        if prev: d1.dep(prev)
        self.slab_dma[idx] = [d1, d2]
        if split: return out, [d1, d2]
        return out + [d1, d2]

    def release(self, idx):
        sl = self.slot_of[idx]
        self.slot_rd[sl] = self.slab_rd[idx]
        self.free.append(sl)

    def read_slab(self, idx, t, dep=True):
        if idx >= len(self.slabs): return []
        dst = AF.sub((idx % 2) * 8 + t * 4, 4)
        reg, i = self.slot_of[idx]
        base = {"W": vTr, "X": vTrX, "H": vTrH1 if idx < P00 else vTrH2}[reg][t]
        off = i * SLAB
        r1 = ds_read_tr(dst.sub(0, 2), base, off)
        r2 = ds_read_tr(dst.sub(2, 2), base, off + 512)
        if t == 0 and dep: r1.dep(self.slab_dma[idx])
        lst = self.slab_rd.setdefault(idx, [])
        if len(lst) >= 4: lst.clear()
        lst.extend([r1, r2])
        return [r1, r2]

    def fill(self, fixed, cap):
        mem = [i for i in fixed if i.kind in self.MEM]
        rest = [i for i in fixed if i.kind not in self.MEM]
        if self.bg and not isinstance(self.bg[0], list) and self.bg[0].kind in self.MEM and len(mem) < 3:
            mem.append(self.bg.popleft())
        used = sum(i.cost for i in rest if i.kind not in ("salu", "pseudo"))
        lim = cap - (1 if mem else 0)
        while self.bg and used < lim:
            item = self.bg[0]
            if isinstance(item, list):
                self.bg.popleft(); rest += item
                used += sum(i.cost for i in item if i.kind != "salu")
                continue
            if item.kind in self.MEM: break
            self.bg.popleft()
            rest.append(item)
            if item.kind != "salu": used += item.cost
        return mem + rest

    def flush_bg(self):
        while self.bg: self.p(self.bg.popleft())

    def gemm_pass(self, first, nk, acc, bfrag, bload=None, extra=None, cap=5, bg_start=1, next_reads=True,
                  k0=0, k1=None):
        p = self.p
        for s in range(k0, nk if k1 is None else k1):
            sg = first + s
            last = (s == nk - 1)
            nxt = (not last) or next_reads
            a = [AF.sub((sg % 2) * 8 + t * 4, 4) for t in range(2)]
            gaps = [[], [], [], []]
            land = None
            r0 = r1 = []
            if nxt and sg + 1 < len(self.slabs):
                r0 = self.read_slab(sg + 1, 0, dep=False); r1 = self.read_slab(sg + 1, 1)
                land = self.slab_dma[sg + 1]
            b0 = b1 = []
            if bload and not last:
                x0, x1 = bload(s + 1, 0), bload(s + 1, 1)
                b0 = [x0] if x0 else []; b1 = [x1] if x1 else []
            gaps[0] = r0 + b0
            gaps[1] = b1 + r1
            self.release(sg)
            sc, dm = self.issue_next(split=True)
            gaps[1] = gaps[1] + sc; gaps[2] = dm[:1]; gaps[3] = dm[1:]
            more = self.issue_next() if self.can_issue() else []
            pre = []
            if extra:
                ex = extra(s)
                for g in range(4): gaps[g] = gaps[g] + ex[g]
                if len(ex) > 4: pre = ex[4]
            p(pre)
            mode = self.o("stampmode", "phase")
            if mode.startswith("ks") and first == int(mode[2:].split("_")[0]) and s in [int(x) for x in mode.split("_")[1:]]:
                p(self.stamp(mode))
            m = 0
            for t in range(2):
                for nt in range(2):
                    d = acc.sub((t * 2 + nt) * 16, 16)
                    mm = mfma(d, a[t], bfrag(s, nt), 0 if s == 0 else d)
                    if m == 0 and land: mm.dep(land)
                    p(mm)
                    use_bg = (s * 4 + m) >= bg_start
                    p(self.fill(gaps[m], cap) if use_bg else
                      [i for i in gaps[m] if i.kind in self.MEM] + [i for i in gaps[m] if i.kind not in self.MEM])
                    m += 1
            p(more)

    def sel_srd(self, dst, choices):
        out = []
        for i in range(3): out.append(salu("s_mov_b32", dst[i], choices[3][i]))
        for w in (2, 1, 0):
            if str(choices[w]) == str(choices[3]): continue
            out.append(salu("s_cmp_eq_u32", sW, w))
            for i in range(3): out.append(salu("s_cselect_b32", dst[i], choices[w][i], dst[i]))
        out.append(salu("s_mov_b32", dst[3], 0x20000))
        return out

    def one_lane(self, dst, lane, soff, tmp):
        return [salu("s_cmp_eq_u32", sW, 0), salu("s_cselect_b32", sT3, soff, OOB),
                valu("v_mov_b32", dst, OOB), valu("v_cmp_eq_u32", "vcc", 0, lane), valu("v_mov_b32", tmp, sT3),
                valu("v_cndmask_b32", dst, dst, tmp, "vcc")]

    def prologue(self):
        p = self.p
        p(salu("s_cmp_ge_u32", S(2), 256), raw("s_cbranch_scc1 L_end", "branch"))
        p(raw("s_load_dwordx16 s[72:87], s[0:1], 0", "smem"), raw("s_load_dwordx8 s[88:95], s[0:1], 64", "smem"))
        lane = V(232); t0, t1, t2, t3 = V(233), V(234), V(235), V(236)
        p(valu("v_lshrrev_b32", t0, 6, V(0)), valu("v_and_b32", lane, 63, V(0)))
        p(valu("v_readfirstlane_b32", sW, t0))
        p(salu("s_and_b32", sJ, S(2), 7), salu("s_lshr_b32", sTB, S(2), 3))
        p(salu("s_lshl_b32", sT0, sTB, 6), salu("s_lshl_b32", sT1, sW, 4), salu("s_add_u32", sT0, sT0, sT1),
          salu("s_lshl_b32", sT0, sT0, 10))
        p(valu("v_lshrrev_b32", t0, 2, lane), valu("v_lshlrev_b32", t0, 10, t0),
          valu("v_and_b32", t1, 3, lane), valu("v_lshlrev_b32", t1, 4, t1),
          valu("v_add3_u32", t0, t0, t1, sT0))
        p(salu("s_lshl_b32", sT0, sTB, 5), salu("s_add_u32", sT0, sT0, sJ), salu("s_lshl_b32", sT0, sT0, 7),
          salu("s_add_u32", sT0, sT0, WS_FLAG))
        p(self.one_lane(V(237), lane, sT0, V(239)), valu("v_mov_b32", V(238), 0))
        p(raw("s_waitcnt lgkmcnt(0)"))
        def srd(dst, src, nbytes):
            p(salu("s_mov_b32", dst[0], S(src)), salu("s_mov_b32", dst[1], S(src + 1)),
              salu("s_mov_b32", dst[2], nbytes), salu("s_mov_b32", dst[3], 0x20000))
        srd(srdWS, 94, 1 << 28)
        srd(srdX, 72, 2048 * 512 * 2)
        p(buf_store(V(238), V(237), srdWS, 0, 0, "sc1"), buf_store(V(238), V(237), srdWS, 0, 1024, "sc1"),
          buf_store(V(238), V(237), srdWS, 0, 2048, "sc1"))
        self.xloads = []
        for q in range(16):
            self.xloads.append(p(buf_load(V(4 * q, 4), t0, srdX, 0, q * 64)))
        srd(srdG, 84, 512 * 1792 * 2); srd(srdU, 86, 512 * 1792 * 2)
        p(salu("s_lshl_b32", sRing, sW, 14), salu("s_add_u32", sRing, sRing, W_BASE))
        row, swz = t1, t2
        p(valu("v_lshrrev_b32", row, 3, lane))
        p(valu("v_lshrrev_b32", t3, 4, lane), valu("v_and_b32", t3, 1, t3))
        p(valu("v_bfe_u32", swz, lane, 2, 1), valu("v_xor_b32", swz, swz, t3), valu("v_lshlrev_b32", swz, 6, swz))
        p(valu("v_and_b32", t3, 3, lane), valu("v_lshlrev_b32", t3, 4, t3), valu("v_add_u32", swz, swz, t3))
        p(salu("s_mul_i32", sT0, sJ, 448), salu("s_and_b32", sT1, sJ, 1),
          salu("s_lshl_b32", sT2, sW, 7), salu("s_add_u32", sT2, sT0, sT2))
        p(salu("s_lshl_b32", sT3, sT1, 6), salu("s_add_u32", sT2, sT2, sT3))
        p(salu("s_cmp_eq_u32", sW, 3), salu("s_cselect_b32", sT3, sT1, 0), salu("s_mul_i32", sT3, sT3, 512),
          salu("s_sub_u32", sT2, sT2, sT3))
        p(valu("v_mul_u32_u24", vGU1, 3584, row), valu("v_add3_u32", vGU1, vGU1, swz, sT2),
          valu("v_add_u32", vGU2, 8 * 3584 - 1024, vGU1))
        p(salu("s_mul_i32", sRingH, sW, 3 * SLAB))
        self.add_slots("H", 3, lambda idx: idx < U0)
        while self.can_issue(): p(self.issue_next())
        srd(srdK, 74, 8 * 2048 * 128 * 2); srd(srdV, 76, 8 * 2048 * 128 * 2)
        srd(srdQ, 78, 512 * 4096 * 2); srd(srdO, 80, 4096 * 512 * 2)
        srd(srdD, 88, 1792 * 512 * 2)
        srd(srdOut, 90, 2048 * 512 * 2); srd(srdDbg, 92, 256)
        if self.o("pf", 1):
            ins, lds = self.pf_kind("G", [V(222), V(223)])
            p(ins, lds)
            ins, lds = self.pf_kind("U", [V(220), V(221)])
            p(ins, lds, self.pf_code(lane))
        p(salu("s_and_b32", sT1, sJ, 1))
        p(salu("s_lshl_b32", sT2, sW, 1), salu("s_add_u32", sT2, sT2, sT1))
        p(salu("s_lshl_b32", sT3, sT2, 12), salu("s_add_u32", sT0, sT3, 4096))
        p(salu("s_cmp_eq_u32", sT2, 6), salu("s_cselect_b32", sT0, MISC, sT0))
        p(salu("s_cmp_eq_u32", sT2, 7), salu("s_cselect_b32", sT3, MISC, sT3), salu("s_cselect_b32", sT0, 0, sT0))
        p(valu("v_lshlrev_b32", vLin0, 4, lane), valu("v_add_u32", vLinX, X_BASE, vLin0))
        p(valu("v_add_u32", vH[0], sT3, vLin0), valu("v_add_u32", vH[1], sT0, vLin0))
        p(salu("s_mul_i32", sDbase, sJ, 224 * 1024), salu("s_mul_i32", sPbase, sJ, 512 * 1024))
        p(salu("s_lshl_b32", sT0, sTB, 3), salu("s_add_u32", sT0, sT0, sJ), salu("s_lshl_b32", sT0, sT0, 16),
          salu("s_lshl_b32", sT1, sW, 14), salu("s_add_u32", sBslab, sT0, sT1),
          salu("s_add_u32", sSslab, sBslab, WS_S))
        p(salu("s_mov_b32", sCs, f2u(1.4426950408889634 / 128 ** 0.5)), salu("s_mov_b32", sThr, f2u(2.0 ** 64)),
          salu("s_mov_b32", sFb, 0), salu("s_mov_b32", sOnes, 0x3f803f80))
        p(salu("s_mul_i32", sKlds, sW, 2 * 1088), salu("s_add_u32", sKlds, sKlds, X_BASE),
          salu("s_lshl_b32", sVlds, sW, 11), salu("s_add_u32", sVlds, sVlds, X_BASE + V_OFF))
        p(salu("s_lshl_b32", sT0, sJ, 10), salu("s_lshl_b32", sT1, sW, 8), salu("s_add_u32", sT0, sT0, sT1))
        p(valu("v_lshlrev_b32", vQ1, 13, row), valu("v_add3_u32", vQ1, vQ1, swz, sT0),
          valu("v_add_u32", vQ2, 8 * 8192 - 1024, vQ1))
        p(valu("v_lshlrev_b32", vDP1, 10, row), valu("v_add3_u32", vDP1, vDP1, swz, sT1),
          valu("v_add_u32", vDP2, 8 * 1024 - 1024, vDP1))
        g1, r, c = t0, t1, t2
        p(valu("v_lshrrev_b32", g1, 5, lane), valu("v_lshlrev_b32", g1, 3, g1))
        p(valu("v_bfe_u32", r, lane, 2, 2), valu("v_add_u32", g1, g1, r), valu("v_lshlrev_b32", g1, 7, g1))
        p(valu("v_bfe_u32", t3, lane, 4, 1), valu("v_lshlrev_b32", t3, 5, t3), valu("v_add_u32", g1, g1, t3))
        p(valu("v_and_b32", c, 1, lane), valu("v_lshlrev_b32", c, 4, c),
          valu("v_bfe_u32", t3, lane, 1, 1), valu("v_lshlrev_b32", t3, 3, t3), valu("v_add3_u32", g1, g1, c, t3))
        p(valu("v_lshrrev_b32", r, 1, r), valu("v_lshlrev_b32", r, 6, r))
        p(valu("v_add3_u32", vTr[0], g1, r, sRing))
        p(valu("v_xor_b32", r, 64, r), valu("v_add3_u32", vTr[1], g1, r, sRing))
        p(salu("s_sub_u32", sT0, sRingH, sRing))
        for t in range(2): p(valu("v_add_u32", vTrH1[t], sT0, vTr[t]))
        p(valu("v_lshrrev_b32", t0, 5, lane), valu("v_lshlrev_b32", t0, 1, t0))
        p(valu("v_xor_b32", t1, lane, t0), valu("v_lshlrev_b32", t1, 4, t1), valu("v_add_u32", vXn[0], X_BASE, t1))
        p(valu("v_xor_b32", t1, 64, t1), valu("v_add_u32", vXn[1], X_BASE, t1))
        self.lane = lane

    def pf_slab(self, srd, v1, v2, soff_ins, dst):
        m = "nt" if self.o("pfnt", 0) else ""
        return soff_ins, [buf_load(dst[0], v1, srd, sT2, 0, m), buf_load(dst[1], v2, srd, sT2, 1024, m)]

    def pf_kind(self, kind, dst):
        if kind == "G": return self.pf_slab(srdG, vGU1, vGU2, [salu("s_mul_i32", sT2, sTB, 16 * 3584)], dst)
        if kind == "U": return self.pf_slab(srdU, vGU1, vGU2, [salu("s_mul_i32", sT2, sTB, 16 * 3584)], dst)
        if kind == "Q0": return self.pf_slab(srdQ, vQ1, vQ2, [salu("s_lshl_b32", sT2, sTB, 17)], dst)
        if kind == "Q1": return self.pf_slab(srdQ, vQ1, vQ2, [salu("s_lshl_b32", sT2, sTB, 17), salu("s_add_u32", sT2, sT2, 128)], dst)
        if kind == "D":
            ins = [salu("s_lshl_b32", sT2, sTB, 14), salu("s_cmp_ge_u32", sTB, 14),
                   salu("s_cselect_b32", sT1, 14 * 16384 - 128, 0), salu("s_sub_u32", sT2, sT2, sT1),
                   salu("s_add_u32", sT2, sT2, sDbase), salu("s_cmp_ge_u32", sTB, 28), salu("s_cselect_b32", sT2, OOB, sT2)]
            return self.pf_slab(srdD, vDP1, vDP2, ins, dst)
        if kind in ("P0", "P1"):
            ins = [salu("s_lshl_b32", sT2, sTB, 14), salu("s_add_u32", sT2, sT2, sPbase)]
            if kind == "P1": ins.append(salu("s_add_u32", sT2, sT2, 128))
            return self.pf_slab(srdO, vDP1, vDP2, ins, dst)

    def pf_kv(self, tmp, dst):
        ins = [salu("s_lshr_b32", sT2, sTB, 1), salu("s_lshl_b32", sT2, sT2, 13), salu("s_lshl_b32", sT1, sW, 11),
               salu("s_add_u32", sT2, sT2, sT1), salu("s_mul_i32", sT1, sJ, 2048 * 256), salu("s_add_u32", sT2, sT2, sT1),
               salu("s_add_u32", sT2, sT2, 1536 * 256),
               valu("v_lshlrev_b32", tmp, 3, vLin0), valu("v_and_b32", tmp, 0x780, tmp),
               salu("s_and_b32", sT1, sTB, 1), salu("s_cmp_eq_u32", sT1, 0)]
        for i in range(3): ins.append(salu("s_cselect_b32", srdP[i], srdK[i], srdV[i]))
        ins.append(salu("s_mov_b32", srdP[3], 0x20000))
        return ins, [buf_load(dst, tmp, srdP, sT2, 0, "nt" if self.o("pfnt", 0) else "")]

    def pf_batch(self, slot, name):
        out = [salu("s_and_b32", sT0, sTB, 3), salu("s_cmp_eq_u32", sT0, slot), raw(f"s_cbranch_scc0 L_pf{name}", "branch")]
        if self.o("pfw3", 0): out += [salu("s_cmp_eq_u32", sW, 3), raw(f"s_cbranch_scc0 L_pf{name}", "branch")]
        dst = [V(208 + i) for i in range(8)]
        k = 0
        for kind in ("Q0", "Q1", "D"):
            ins, lds = self.pf_kind(kind, dst[k:k + 2]); k += 2
            out += ins + lds
        ins, lds = self.pf_kv(V(216), dst[k])
        out += ins + lds
        for i in out:
            if i.kind == "vload": i.optional = True
        out.append(label(f"L_pf{name}"))
        return out

    def pf_code(self, lane):
        t0 = V(180)
        out = [salu("s_lshl_b32", sT0, sTB, 2), salu("s_add_u32", sT0, sT0, sW), salu("s_lshl_b32", sT0, sT0, 10),
               valu("v_and_b32", t0, 7, lane), valu("v_lshlrev_b32", t0, 7, t0), valu("v_add_u32", t0, sT0, t0)]
        srdC = S(72, 4)
        out += [label("L_pc"), raw("s_getpc_b64 s[72:73]", "salu", wr=["s72", "s73"]),
                raw("s_mov_b32 s74, L_code_end-L_pc-4", "salu", wr=["s74"]), salu("s_mov_b32", srdC[3], 0x20000)]
        out += [buf_load(V(181), t0, srdC)]
        return out

    def layernorm(self):
        p = self.p; lane = self.lane
        a0, a1, b0, b1 = V(65), V(66), V(67), V(69)
        first = True
        for i in range(64):
            x = V(i); sa = (a0, a1)[i & 1]; sb = (b0, b1)[i & 1]
            p(valu("v_dot2_f32_bf16", sa, x, sOnes, 0 if i < 2 else sa))
            p(valu("v_dot2_f32_bf16", sb, x, x, 0 if i < 2 else sb))
        p(salu("s_lshl_b32", sT0, sTB, 3), self.one_lane(V(77), lane, sT0, V(79)), valu("v_mov_b32", V(78), 1))
        p(raw(f"buffer_atomic_add {V(78)}, {V(77)}, {srdDbg}, 0 offen sc1", "vatomic", rd=["v78", "v77"] + srdDbg.regs()))
        if self.o("pf", 1): p(self.pf_batch(0, "a"))
        p(valu("v_add_f32", a0, a0, a1), valu("v_add_f32", b0, b0, b1))
        for perm in ("[1,0,3,2]", "[2,3,0,1]"):
            p(valu("v_add_f32_dpp", a0, a0, a0, mods=f"quad_perm:{perm} row_mask:0xf bank_mask:0xf"))
            p(valu("v_add_f32_dpp", b0, b0, b0, mods=f"quad_perm:{perm} row_mask:0xf bank_mask:0xf"))
        mean, var, rs, nb = V(68), V(71), V(70), V(72)
        p(valu("v_mul_f32", mean, f2u(1 / 512), a0), valu("v_mul_f32", var, f2u(1 / 512), b0))
        p(valu("v_fma_f32", var, Neg(mean), mean, var), valu("v_max_f32", var, 0, var),
          valu("v_add_f32", var, f2u(1e-5), var), valu("v_rsq_f32", rs, var))
        p(valu("v_mul_f32", nb, mean, rs), valu("v_sub_f32", nb, 0, nb))
        wa, t0, t1 = V(74), V(75), V(76)
        p(valu("v_lshrrev_b32", t0, 2, lane))
        p(salu("s_and_b32", sT0, sW, 1), salu("s_lshl_b32", sT0, sT0, 4))
        p(valu("v_add_u32", t0, sT0, t0))
        p(valu("v_and_b32", t1, 1, lane), valu("v_lshlrev_b32", t1, 5, t1), valu("v_add_u32", t0, t0, t1))
        p(valu("v_and_b32", t1, 3, lane), valu("v_lshlrev_b32", t1, 1, t1), valu("v_xor_b32", t0, t0, t1),
          valu("v_lshlrev_b32", t0, 4, t0))
        p(valu("v_bfe_u32", t1, lane, 1, 1), valu("v_lshlrev_b32", t1, 11, t1))
        p(salu("s_lshr_b32", sT0, sW, 1), salu("s_lshl_b32", sT0, sT0, 10), salu("s_add_u32", sT0, sT0, X_BASE))
        p(valu("v_add3_u32", wa, t0, t1, sT0))
        wr = []
        for q in range(16):
            tt = [V(80 + 2 * ((4 * q + i) % 8), 2) for i in range(4)]
            for i in range(4):
                x = V(4 * q + i)
                p(valu("v_lshlrev_b32", tt[i][0], 16, x), valu("v_and_b32", tt[i][1], 0xffff0000, x))
            for i in range(4):
                p(valu("v_pk_fma_f32", tt[i], tt[i], V(70, 2), V(72, 2), mods="op_sel_hi:[1,0,0]"))
            for i in range(4):
                p(valu("v_cvt_pk_bf16_f32", V(4 * q + i), tt[i][0], tt[i][1]))
            wr.append(p(ds_write(wa, V(4 * q, 4), q * 4096)))
        p(waitfor(wr), barrier())

    def h_epi(self, G, U):
        out = []; self.h_writes = []
        for t in range(2):
            for nt in range(2):
                g = G.sub((t * 2 + nt) * 16, 16); u = U.sub((t * 2 + nt) * 16, 16)
                for s in range(2):
                    for i in range(8):
                        out.append(valu("v_max_f32", g[8 * s + i], 0, g[8 * s + i]))
                    for i in range(8):
                        out.append(valu("v_mul_f32", g[8 * s + i], g[8 * s + i], u[8 * s + i]))
                    for i in range(4):
                        out.append(valu("v_cvt_pk_bf16_f32", u[8 * s + i], g[8 * s + 2 * i], g[8 * s + 2 * i + 1]))
                    mode = self.o("hw", "b128")
                    if mode == "b64":
                        ws = [ds_write(vH[t], u.sub(8 * s, 2), (s * 2 + nt) * 1024), ds_write(vH[t], u.sub(8 * s + 2, 2), (s * 2 + nt) * 1024 + 8)]
                        self.h_writes += ws; out += ws
                    else:
                        w = ds_write(vH[t], u.sub(8 * s, 4), (s * 2 + nt) * 1024)
                        self.h_writes.append(w)
                        if mode == "b128": out.append(w)
        return out

    def q_epi(self, acc, ps):
        out = []
        for t in range(2):
            for nt in range(2):
                a = acc.sub((t * 2 + nt) * 16, 16)
                for s in range(2):
                    d = qfrag(ps * 4 + 2 * t + s, nt)
                    for i in range(8):
                        out.append(valu("v_mul_f32", a[8 * s + i], sCs, a[8 * s + i]))
                    for i in range(4):
                        out.append(valu("v_cvt_pk_bf16_f32", d[i], a[8 * s + 2 * i], a[8 * s + 2 * i + 1]))
        return out

    def b_pack(self, acc, ps):
        out = []
        for t in range(2):
            for nt in range(2):
                a = acc.sub((t * 2 + nt) * 16, 16)
                for s in range(2):
                    d = a.sub(8 * s, 4); k = BPK[ps][t].sub((s * 2 + nt) * 4, 4)
                    for i in range(4):
                        out.append(valu("v_cvt_pk_bf16_f32", d[i], a[8 * s + 2 * i], a[8 * s + 2 * i + 1]))
                    for i in range(4):
                        out.append(valu("v_accvgpr_write_b32", k[i], d[i]))
        return out

    def b_store(self, n):
        ps, t, f = n >> 3, (n >> 2) & 1, n & 3
        st = buf_store(BPK[ps][t].sub(f * 4, 4), vLin0, srdWS, sT3, f * 1024, "sc1")
        self.b_stores.append(st)
        return [salu("s_add_u32", sT3, sBslab, ps * 8192 + t * 4096)], st

    def s_pack(self, acc):
        out = []
        for t in range(2):
            for nt in range(2):
                a = acc.sub((t * 2 + nt) * 16, 16)
                for s in range(2):
                    d = a.sub(8 * s, 4)
                    for i in range(4):
                        out.append(valu("v_cvt_pk_bf16_f32", d[i], a[8 * s + 2 * i], a[8 * s + 2 * i + 1]))
        return out

    def s_store(self, acc, ps, n):
        t, f = n >> 2, n & 3
        s, nt = f >> 1, f & 1
        st = buf_store(acc.sub((t * 2 + nt) * 16 + 8 * s, 4), vLin0, srdWS, sT3, f * 1024, "sc1")
        self.s_stores.append(st)
        return [salu("s_add_u32", sT3, sSslab, ps * 8192 + t * 4096)], st

    def o_group(self, s, nt):
        t, h = s >> 1, s & 1
        tmp = V(8 * ((2 * s + nt) % 4), 8)
        src = OACC.sub((t * 2 + nt) * 16 + 8 * h, 8)
        out = []
        for i in range(8): out.append(valu("v_accvgpr_read_b32", tmp[i], src[i]))
        for i in range(8): out.append(valu("v_mul_f32", tmp[i], vLinv[nt], tmp[i]))
        for i in range(4): out.append(valu("v_cvt_pk_bf16_f32", tmp[i], tmp[2 * i], tmp[2 * i + 1]))
        w = ds_write(vOb[0], tmp.sub(0, 4), (s * 2 + nt) * 1024)
        self.o_writes.append(w); out.append(w)
        return out

    def att_addr(self):
        out = []
        l, a, b, c = vA[0], vA[1], vA[2], vA[3]
        out += [valu("v_lshrrev_b32", l, 4, vLin0)]
        out += [salu("s_mul_i32", sT0, sJ, 2048 * 256), salu("s_add_u32", sT0, sT0, 1536 * 256),
                salu("s_lshl_b32", sT1, sW, 11), salu("s_add_u32", sT0, sT0, sT1)]
        out += [valu("v_lshrrev_b32", a, 4, l), valu("v_and_b32", b, 15, l), valu("v_xor_b32", b, b, a),
                valu("v_lshlrev_b32", b, 4, b), valu("v_lshlrev_b32", c, 8, a), valu("v_add3_u32", vK1, b, c, sT0),
                valu("v_add_u32", vK2, 1024, vK1), valu("v_subrev_u32", vK2, 1088, vK2)]
        out += [valu("v_bfe_u32", b, l, 2, 2), valu("v_xor_b32", b, b, a), valu("v_lshlrev_b32", b, 6, b),
                valu("v_add3_u32", vV1, b, c, sT0), valu("v_and_b32", b, 3, l), valu("v_lshlrev_b32", b, 4, b),
                valu("v_add_u32", vV1, vV1, b)]
        out += [valu("v_bfe_u32", a, l, 4, 1), valu("v_lshlrev_b32", a, 2, a),
                valu("v_bfe_u32", b, l, 2, 1), valu("v_lshlrev_b32", b, 1, b), valu("v_add_u32", a, a, b),
                valu("v_bfe_u32", b, l, 3, 1), valu("v_add_u32", a, a, b),
                valu("v_mul_u32_u24", a, 1088, a),
                valu("v_and_b32", b, 3, l), valu("v_lshlrev_b32", c, 8, b), valu("v_add_u32", a, a, c),
                valu("v_lshrrev_b32", c, 5, l), valu("v_xor_b32", c, c, b),
                valu("v_lshlrev_b32", c, 4, c), valu("v_add_u32", vKr[0], a, c), valu("v_add_u32", vKr[0], X_BASE, vKr[0]),
                valu("v_xor_b32", c, 32, c), valu("v_add_u32", vKr[1], a, c), valu("v_add_u32", vKr[1], X_BASE, vKr[1])]
        out += [valu("v_lshrrev_b32", a, 5, l), valu("v_lshlrev_b32", a, 3, a), valu("v_bfe_u32", b, l, 2, 2),
                valu("v_add_u32", a, a, b), valu("v_lshlrev_b32", a, 8, a),
                valu("v_bfe_u32", c, l, 4, 1), valu("v_lshlrev_b32", c, 5, c), valu("v_add_u32", a, a, c),
                valu("v_and_b32", c, 1, l), valu("v_lshlrev_b32", c, 4, c), valu("v_add_u32", a, a, c),
                valu("v_bfe_u32", c, l, 1, 1), valu("v_lshlrev_b32", c, 3, c), valu("v_add_u32", a, a, c),
                valu("v_add_u32", a, X_BASE + V_OFF, a), valu("v_lshlrev_b32", b, 6, b)]
        for t in range(4):
            out += [valu("v_xor_b32", c, t * 64, b), valu("v_add_u32", vVr[t], a, c)]
        out += [valu("v_mov_b32", vMf[0], 0xff800000), valu("v_mov_b32", vMf[1], 0xff800000)]
        out += [salu("s_sub_u32", sT0, sRingH, sRing)]
        for t in range(2): out.append(valu("v_add_u32", vTrH2[t], sT0, vTr[t]))
        for b_ in range(4):
            out += [salu("s_add_u32", sT0, sW, b_), salu("s_and_b32", sT0, sT0, 3), salu("s_lshl_b32", sOblk[b_], sT0, 14),
                    salu("s_lshl_b32", sT0, sT0, 17), salu("s_add_u32", sPblk[b_], sT0, sPbase)]
        return out

    def k_dma(self, u):
        if u > 15: return []
        o = [salu("s_add_u32", "m0", sKlds, (u % K_SLOTS) * K_SLOT), salu("s_mov_b32", sOffK, u * 8192),
             dma(vK1, srdK, sOffK, 0), dma(vK2, srdK, sOffK, 1088)]
        self.kd[u] = o[2:]
        return o
    def v_dma(self, u):
        if u > 15: return []
        o = [salu("s_add_u32", "m0", sVlds, (u % V_SLOTS) * V_SLOT), salu("s_mov_b32", sOffV, u * 8192),
             dma(vV1, srdV, sOffV, 0), dma(vV1, srdV, sOffV, 1024)]
        self.vd[u] = o[2:]
        return o
    def k_reads(self, u):
        return [ds_read(KF.sub(4 * ks, 4), vKr[ks & 1], (u % K_SLOTS) * K_SLOT + (ks >> 1) * 64) for ks in range(8)]
    def v_reads(self, u):
        out = []
        for s in range(2):
            for t in range(4):
                d = VF.sub((s * 4 + t) * 4, 4)
                off = (u % V_SLOTS) * V_SLOT + s * 4096
                out += [ds_read_tr(d.sub(0, 2), vVr[t], off), ds_read_tr(d.sub(2, 2), vVr[t], off + 1024)]
        return out
    def qk_mfmas(self, u, c0):
        sb = SB[u % 2]; out = []
        for ks in range(8):
            for nt in range(2):
                d = sb.sub(16 * nt, 16)
                c = d if ks else (c0 if c0 == 0 else c0.sub(16 * nt, 16))
                out.append(mfma(d, KF.sub(4 * ks, 4), qfrag(ks, nt), c))
        return out
    def pv_mfmas(self, u):
        out = []
        for s in range(2):
            for nt in range(2):
                for t in range(4):
                    d = OACC.sub((t * 2 + nt) * 16, 16)
                    out.append(mfma(d, VF.sub((s * 4 + t) * 4, 4), PF.sub((s * 2 + nt) * 4, 4), 0 if (u == 0 and s == 0) else d))
        return out
    def softmax_items(self, u):
        sb = SB[u % 2]; seq = []
        for f in range(4):
            s, nt = f >> 1, f & 1
            for i in range(8): seq.append((f, nt, sb[16 * nt + 8 * s + i], i))
        groups = []
        for g in range(35):
            it = []
            if g < 32:
                it.append(valu("v_exp_f32", seq[g][2], seq[g][2]))
            if 1 <= g <= 32:
                f, nt, r, i = seq[g - 1]
                acc = vL[nt * 2 + ((i + 1) & 1)]
                if u == 0 and f < 2 and i < 2: it.append(valu("v_mov_b32", acc, r))
                else: it.append(valu("v_add_f32", acc, acc, r))
            if g >= 4 and g % 2 == 0:
                a = (g - 4) // 2
                f, nt, r, i = seq[2 * a]
                it.append(valu("v_cvt_pk_bf16_f32", PF[f * 4 + (i >> 1)], r, seq[2 * a + 1][2]))
            groups.append(it)
        return groups

    def att_iter(self, u, pre, tail=None):
        p = self.p
        need = []
        if u + 1 <= 15: need += self.kd[u + 1]
        need += self.vd[u]
        p(self.stamp("att"))
        sync = [waitfor(need), barrier()]
        mf = []
        if u >= 1: mf += self.pv_mfmas(u - 1)
        if u + 1 <= 15: mf += self.qk_mfmas(u + 1, NEGM)
        else: mf += self.pv_mfmas(15)
        n = len(mf)
        sm = self.softmax_items(u)
        kr = self.k_reads(u + 1) if u + 1 <= 15 else []
        vr = self.v_reads(u)
        dm = self.k_dma(u + 3) + self.v_dma(u + 2)
        bsl = [self.b_store(2 * u), self.b_store(2 * u + 1)] if u < 8 else []
        if u == 9: sync = [waitfor(need, self.b_stores), barrier(), buf_store(V(60), vFlag, srdWS, 0, 0, "sc1")]
        mem = [[] for _ in range(n)]
        alu = [[] for _ in range(n)]
        if u == 0:
            p(sync); p(kr); p(pre[:8])
            for bs, bst in bsl: p(bs, bst)
            p(dm)
            rest = pre[8:]
            for g in range(n):
                mem[g] = vr[g:g + 1]
                alu[g] = (rest[3 * g:3 * g + 3] if g < 8 else []) + sm[2 * g] + sm[2 * g + 1]
            alu[n - 1] += sm[32] + sm[33] + sm[34]
        elif u == 15:
            mem[0] = sync
            for i, (sc, ld) in enumerate(self.b_loads[12:16]):
                alu[1 + 2 * i].append(sc); mem[2 + 2 * i].append(ld)
            for k in range(35): alu[(k * 4) // 5] += sm[k]
            for t in range(4):
                mem[4 + t] += vr[2 * t:2 * t + 2]
                mem[12 + t] += vr[8 + 2 * t:8 + 2 * t + 2]
            for g, items in tail.items(): alu[g] += items
        else:
            mem[0] = sync
            for k in range(35): alu[min(k, 31)] += sm[k]
            for i, r in enumerate(kr): mem[1 + i].append(r)
            for i, r in enumerate(vr): mem[16 + i].append(r)
            for i, (bs, bst) in enumerate(bsl):
                alu[17 + 4 * i] += bs; mem[18 + 4 * i].append(bst)
            if u == 11:
                mem[2].append(buf_load(vStart, vStartOff, srdDbg, 0, 0, "sc1"))
                mem[3].append(buf_load(vBfl, vFlOff, srdWS, 0, 0, "sc1"))
            if u >= 12:
                for i, (sc, ld) in enumerate(self.b_loads[4 * (u - 12):4 * (u - 12) + 4]):
                    alu[17 + 3 * i].append(sc); mem[18 + 3 * i].append(ld)
            for i in range(0, len(dm), 4):
                g = 9 + i
                alu[g] += dm[i:i + 2]; mem[g + 1].append(dm[i + 2]); mem[g + 2].append(dm[i + 3])
            if u == 2:
                self.allow["H"] = lambda idx: idx >= P00
                g = 17
                while self.can_issue():
                    sc, d = self.issue_next(split=True)
                    alu[g] += sc; mem[g + 1].append(d[0]); mem[g + 2].append(d[1]); g += 3
            if u == 1 and self.o("pf", 1):
                pre_, ld = self.pf_kind("P1", [vA[4], vA[5]])
                alu[24] += pre_
                mem[26].append(ld[0]); mem[27].append(ld[1])
        for g in range(n):
            p(mf[g]); p(mem[g]); p(alu[g])

    def attention_body(self):
        p = self.p
        sb = SB[0]
        m = [vT[0], vT[1]]; tt = [vT[2], vT[3]]
        for nt in range(2):
            r = sb.sub(16 * nt, 16)
            p(valu("v_max3_f32", m[nt], r[0], r[1], r[2]))
            for i in range(3, 15, 2): p(valu("v_max3_f32", m[nt], m[nt], r[i], r[i + 1]))
            p(valu("v_max_f32", m[nt], m[nt], r[15]))
        for nt in range(2): p(valu("v_mov_b32", tt[nt], m[nt]))
        for nt in range(2): p(valu("v_permlane32_swap_b32", m[nt], tt[nt]))
        for nt in range(2): p(valu("v_max3_f32", m[nt], m[nt], tt[nt], vMf[nt]))
        for nt in range(2): p(valu("v_sub_f32", NEGM[16 * nt], 0, m[nt]))
        for i in range(1, 16):
            for nt in range(2): p(valu("v_mov_b32", NEGM[16 * nt + i], NEGM[16 * nt]))
        pre0 = [valu("v_add_f32", sb[16 * nt + 8 * s + i], sb[16 * nt + 8 * s + i], NEGM[16 * nt + ((i + 1) & 3)])
                for s in range(2) for nt in range(2) for i in range(8)]
        self.b_stores = []
        self.b_loads = self.part_loads(WS_B, 0, BIN[0]) + self.part_loads(WS_B, 1, BIN[1])
        for u in range(15):
            if u == 12:
                p(salu("s_mov_b32", sT2, 0))
                self.poll("start", lambda: buf_load(vStart, vStartOff, srdDbg, 0, 0, "sc1"), vStart, 8, "v_cmp_le_u32")
                self.poll("bflag", lambda: buf_load(vBfl, vFlOff, srdWS, 0, 0, "sc1"), vBfl, 1)
            self.att_iter(u, pre0 if u == 0 else [])
        l = [vT[0], vT[1]]; tt = [vT[2], vT[3]]
        fin = []
        for nt in range(2): fin.append(valu("v_add_f32", l[nt], vL[2 * nt], vL[2 * nt + 1]))
        for nt in range(2): fin.append(valu("v_mov_b32", tt[nt], l[nt]))
        fin.append(salu("s_lshl_b32", sT1, sW, 2)); fin.append(salu("s_add_u32", sT1, sT1, MISC))
        for nt in range(2): fin.append(valu("v_permlane32_swap_b32", l[nt], tt[nt]))
        fin.append(valu("v_mov_b32", vT[5], sT1))
        for nt in range(2): fin.append(valu("v_add_f32", l[nt], l[nt], tt[nt]))
        fin.append(valu("v_max_f32", tt[0], l[0], l[1]))
        fin.append(valu("v_cmp_nge_f32", "vcc", sThr, tt[0]))
        for nt in range(2): fin.append(valu("v_rcp_f32", vLinv[nt], l[nt]))
        fin2 = [salu("s_cmp_lg_u64", "vcc", 0), salu("s_cselect_b32", sT0, 1, 0), valu("v_mov_b32", vT[4], sT0)]
        fin2.append(ds_write(vT[5], vT[4], 0))
        flags = V(vT.n + 6, 4)
        fin3 = [valu("v_mov_b32", vT[5], MISC), drain(vm=False), barrier(), ds_read(flags, vT[5], 0)]
        extra = self.read_slab(P00, 0) + self.read_slab(P00, 1)
        extra.append(valu("v_add_u32", vOb[0], sOblk[0], vLinX))
        self.att_iter(15, [], tail={26: fin[:8], 27: fin[8:], 28: fin2, 29: fin3, 30: extra[:2], 31: extra[2:]})
        p(valu("v_or3_b32", flags[0], flags[0], flags[1], flags[2]), valu("v_or_b32", flags[0], flags[0], flags[3]))
        p(valu("v_readfirstlane_b32", sT0, flags[0]))
        p(salu("s_cmp_gt_u32", sT0, sFb), raw("s_cbranch_scc1 L_fallback", "branch"))

    def fallback(self):
        p = self.p
        p(label("L_fallback"))
        p(drain(), barrier())
        p(salu("s_mov_b32", sFb, 1), salu("s_mov_b32", sBslab, OOB))
        for nt in range(2): p(valu("v_mov_b32", vMf[nt], 0xff800000))
        p(salu("s_mov_b32", sT2, 0))
        p(label("L_fb_loop"))
        d = [dma(vK1, srdK, sT2, 0), dma(vK2, srdK, sT2, 1088)]
        p(salu("s_mov_b32", "m0", sKlds), nop(0), d)
        p(drain(), barrier())
        p([ds_read(KF.sub(4 * ks, 4), vKr[ks & 1], (ks >> 1) * 64) for ks in range(8)])
        p(self.qk_mfmas(0, 0))
        for nt in range(2):
            r = SB[0].sub(16 * nt, 16)
            for i in range(0, 16, 2): p(valu("v_max3_f32", vMf[nt], vMf[nt], r[i], r[i + 1]))
        for nt in range(2): p(valu("v_mov_b32", vT[2 + nt], vMf[nt]))
        for nt in range(2): p(valu("v_permlane32_swap_b32", vMf[nt], vT[2 + nt]))
        for nt in range(2): p(valu("v_max_f32", vMf[nt], vMf[nt], vT[2 + nt]))
        p(drain(), barrier())
        p(salu("s_add_u32", sT2, sT2, 8192), salu("s_cmp_lt_u32", sT2, 16 * 8192), raw("s_cbranch_scc1 L_fb_loop", "branch"))
        for u in range(3): p(self.k_dma(u))
        for u in range(2): p(self.v_dma(u))
        p(drain(), barrier())
        p(self.k_reads(0))
        p(drain())
        p(raw("s_branch L_att", "branch"))

    def hload(self, s, nt):
        return ds_read(BF.sub((s % 2) * 8 + nt * 4, 4), vLin0, H_BASE + (s * 2 + nt) * 1024)
    def oload(self, s, nt):
        return ds_read(BF2.sub((s % 2) * 8 + nt * 4, 4), vOb[(s >> 3) & 1], ((s & 7) * 2 + nt) * 1024)

    def reduce8(self, src, acc):
        out = []
        for j in range(8):
            for i in range(4):
                out.append(valu("v_dot2_f32_bf16", acc[2 * i], src[j][i], S(48), 0 if j == 0 else acc[2 * i]))
                out.append(valu("v_dot2_f32_bf16", acc[2 * i + 1], src[j][i], S(49), 0 if j == 0 else acc[2 * i + 1]))
        return out

    def poll(self, name, load, reg, want, op="v_cmp_eq_u32"):
        p = self.p
        p(label(f"L_{name}_chk"))
        p(valu(op, "vcc", want, reg))
        p(salu("s_add_u32", sT2, sT2, 1))
        p(salu("s_cmp_eq_u64", "vcc", -1), raw(f"s_cbranch_scc1 L_{name}_ok", "branch"))
        p(side_begin())
        p(salu("s_cmp_gt_u32", sT2, 400000), raw(f"s_cbranch_scc1 L_{name}_ok", "branch"))
        p(raw("s_sleep 1"), load(), drain(lgkm=False), raw(f"s_branch L_{name}_chk", "branch"))
        p(side_end())
        p(label(f"L_{name}_ok"))

    def tail_setup(self):
        scb, sb0 = sT2, sFrag
        out = [salu("s_lshl_b32", sT0, sJ, 1), salu("s_lshr_b32", sT1, sW, 1), salu("s_add_u32", sT0, sT0, sT1),
               salu("s_lshr_b32", sT1, sT0, 2), salu("s_lshl_b32", sT1, sT1, 3), salu("s_and_b32", sT0, sT0, 3),
               salu("s_add_u32", scb, sT0, sT1),
               salu("s_lshl_b32", sb0, sTB, 19), salu("s_lshl_b32", sT0, scb, 11), salu("s_add_u32", sb0, sb0, sT0),
               salu("s_and_b32", sT1, sW, 1), salu("s_lshl_b32", sT0, sT1, 10), salu("s_add_u32", sb0, sb0, sT0)]
        vx, t1 = vX, V(57)
        out += [salu("s_lshl_b32", sT0, sTB, 16), salu("s_lshl_b32", sT1, sT1, 15), salu("s_add_u32", sT0, sT0, sT1),
                salu("s_lshl_b32", sT1, scb, 5), salu("s_add_u32", sT0, sT0, sT1),
                valu("v_bfe_u32", vx, vLin0, 4, 5), valu("v_lshlrev_b32", vx, 10, vx), valu("v_lshrrev_b32", t1, 9, vLin0),
                valu("v_lshlrev_b32", t1, 4, t1), valu("v_add3_u32", vx, vx, t1, sT0)]
        out += [salu("s_lshl_b32", sT0, sTB, 3), valu("v_mov_b32", vStartOff, sT0),
                salu("s_lshl_b32", sT0, sTB, 12), salu("s_add_u32", sT0, sT0, WS_FLAG),
                valu("v_bfe_u32", vFlOff, vLin0, 4, 3), valu("v_lshlrev_b32", vFlOff, 7, vFlOff),
                valu("v_add_u32", vFlOff, sT0, vFlOff)]
        out += [salu("s_lshl_b32", sT0, sTB, 5), salu("s_add_u32", sT0, sT0, sJ), salu("s_lshl_b32", sT0, sT0, 7),
                salu("s_add_u32", sT0, sT0, WS_FLAG), valu("v_lshrrev_b32", V(58), 4, vLin0)]
        out.append(self.one_lane(vFlag, V(58), sT0, V(59)))
        out += [valu("v_mov_b32", V(60), 1)]
        return out

    def part_loads(self, base, ps, dst):
        out = []
        for j in range(8):
            out.append([salu("s_add_u32", sT0, sFrag, base + j * 65536 + ps * 8192), buf_load(dst[j], vLin0, srdWS, sT0, 0, "sc1")])
        return out

    def silu(self, Bv, e):
        out = []
        for i in range(8): out.append(valu("v_mul_f32", e[i], S(52), Bv[i]))
        for i in range(8): out.append(valu("v_exp_f32", e[i], e[i]))
        for i in range(8): out.append(valu("v_add_f32", e[i], 1.0, e[i]))
        for i in range(8): out.append(valu("v_rcp_f32", e[i], e[i]))
        for i in range(8): out.append(valu("v_mul_f32", Bv[i], e[i], Bv[i]))
        return out

    def finish(self, ps, src, gate, xr):
        xf = V(1 + 8 * ps, 8); sv = V(18 + 8 * ps, 8); o = V(36 + 4 * ps, 4)
        out = []
        for i in range(4):
            out += [valu("v_lshlrev_b32", xf[2 * i], 16, xr[i]), valu("v_and_b32", xf[2 * i + 1], 0xffff0000, xr[i])]
        out += self.reduce8(src, sv)
        for i in range(8): out.append(valu("v_fma_f32", xf[i], gate[i], sv[i], xf[i]))
        for i in range(4): out.append(valu("v_cvt_pk_bf16_f32", o[i], xf[2 * i], xf[2 * i + 1]))
        out.append(buf_store(o, vX, srdOut, 0, 128 * ps))
        return out

    def tail(self, acc1):
        p = self.p
        T = lambda: p(self.stamp("tail"))
        T()
        pk = self.s_pack(acc1)
        order = [0, 2, 1, 3, 4, 6, 5, 7]
        first = len(self.s_stores)
        for k in range(8):
            p(pk[4 * k:4 * k + 4])
            sc, st = self.s_store(acc1, 1, order[k])
            p(sc, st)
        T()
        p(waitfor(self.s_stores[first:]))
        T()
        p(barrier())
        p(buf_store(V(60), vFlag, srdWS, 0, 2048, "sc1"))
        fl = lambda off, reg: (lambda: buf_load(reg, vFlOff, srdWS, 0, off, "sc1"))
        f0, f1 = vBfl, vStart
        p(fl(1024, f0)())
        p(salu("s_mov_b32", S(48), 0x00003f80), salu("s_mov_b32", S(49), 0x3f800000),
          salu("s_mov_b32", S(52), f2u(-1.4426950408889634)), salu("s_mov_b32", sT2, 0))
        gate = [V(208, 8), V(216, 8)]; e = V(224, 8)
        src = [V(4 * j, 4) for j in range(8)]
        def bred(ps):
            for j in range(8):
                for i in range(4): p(valu("v_accvgpr_read_b32", src[j][i], BIN[ps][j][i]))
            p(self.reduce8(src, gate[ps]), self.silu(gate[ps], e))
        bred(0)
        T()
        self.poll("s0flag", fl(1024, f0), f0, 1)
        Ssrc = [[V(64 + (ps * 8 + j) * 4, 4) for j in range(8)] for ps in range(2)]
        p(self.part_loads(WS_S, 0, Ssrc[0]))
        p(fl(2048, f1)())
        T()
        bred(1)
        T()
        self.poll("s1flag", fl(2048, f1), f1, 1)
        T()
        p(self.part_loads(WS_S, 1, Ssrc[1]))
        p(self.finish(0, Ssrc[0], gate[0], self.xr[0]))
        T()
        p(self.finish(1, Ssrc[1], gate[1], self.xr[1]))
        T()

    def main(self):
        p = self.p
        self.build_stream()
        self.init_slots()
        if self.stamps: p(raw("s_memrealtime s[98:99]", "other"))
        self.prologue()
        p(self.stamp())
        self.layernorm()
        p(self.stamp())
        self.dump_lds("xn", X_BASE, 65536, 0)
        xn = lambda s, nt: A((s * 2 + nt) * 4, 4)
        xload = lambda s, nt: ds_read(xn(s, nt), vXn[s & 1], s * 2048 + nt * 1024)
        p(self.read_slab(G0, 0), xload(0, 0), xload(0, 1), self.read_slab(G0, 1))
        def pf_extra(items):
            def f(s):
                g = [[], [], [], []]
                if s in items and self.o("pf", 1):
                    ins, lds = items[s]()
                    g[0] = ins; g[2] = lds[:1]; g[3] = lds[1:]
                return g
            return f
        pfg = {self.o("pfs1", 3): (1, "b"), self.o("pfs2", 12): (2, "c"), self.o("pfs3", 21): (3, "d")}
        def extraG(s):
            g = [[], [], [], []]
            if s in pfg and self.o("pf", 1): return g + [self.pf_batch(*pfg[s])]
            return g
        self.gemm_pass(G0, 32, ACC[0], xn, bload=xload, extra=extraG)
        p(self.stamp())
        p(barrier())
        for t in range(2): p(valu("v_subrev_u32", vTrX[t], W_BASE - X_BASE, vTr[t]))
        if self.o("xring", 0): self.add_slots("X", 8, lambda idx: idx < D10)
        pfx = {} if not self.o("pfq", 0) else {2: lambda: self.pf_kind("Q0", [V(218), V(219)])}
        self.gemm_pass(U0, 32, ACC[1], xn, extra=pf_extra(pfx))
        p(self.stamp())
        self.bg.extend(self.h_epi(ACC[0], ACC[1]))
        self.gemm_pass(Q00, 32, ACC[2], xn, bg_start=self.o("q0bg", 4), cap=self.o("q0cap", 5))
        self.flush_bg()
        if self.o("hw", "b128") == "end": p(self.h_writes)
        p(waitfor(self.h_writes), barrier())
        p(self.stamp())
        self.dump_lds("h", H_BASE, 28672, 1)
        self.bg.extend(self.q_epi(ACC[2], 0))
        self.gemm_pass(Q10, 32, ACC[0], xn, bg_start=4,
                       extra=None)
        self.flush_bg()
        p(self.stamp())
        hb = lambda s, nt: BF.sub((s % 2) * 8 + nt * 4, 4)
        p(self.hload(0, 0), self.hload(0, 1))
        self.bg.extend(self.q_epi(ACC[0], 1))
        self.bg.extend(self.att_addr())
        self.gemm_pass(D00, 14, ACC[1], hb, bload=self.hload, bg_start=4,
                       extra=pf_extra({2: lambda: self.pf_kind("P0", [V(190), V(191)])}))
        self.flush_bg()
        p(self.hload(0, 0), self.hload(0, 1))
        self.bg.extend(self.b_pack(ACC[1], 0))
        self.bg.extend(self.tail_setup())
        def extraD1(s):
            g = [[], [], [], []]
            dm = []
            if s == 0: dm = self.k_dma(0)
            if s == 1: dm = self.v_dma(0)
            if s == 2: dm = self.k_dma(1)
            if s == 3: dm = self.v_dma(1)
            if s == 4: dm = self.k_dma(2)
            if dm: g[0] = dm[:2]; g[1] = dm[2:]
            if s == 0: return g + [[barrier()]]
            if s == 9: g[2] = [waitfor(self.kd[0]), barrier()]
            if s >= 10:
                kr = self.k0_reads
                g[2] = kr[2 * (s - 10):2 * (s - 10) + 2]
            return g
        self.k0_reads = self.k_reads(0)
        self.gemm_pass(D10, 14, ACC[2], hb, bload=self.hload, extra=extraD1, bg_start=4, next_reads=False)
        self.flush_bg()
        p(self.stamp())
        qk0 = self.qk_mfmas(0, 0)
        bp = self.b_pack(ACC[2], 1)
        p(qk0[0], qk0[1], qk0[2])
        for i in range(3, 16):
            p(qk0[i]); p(bp[5 * (i - 3):5 * (i - 2)])
        p(bp[65:])
        p(raw("s_branch L_att_go", "branch"))
        p(label("L_att"))
        p(self.qk_mfmas(0, 0))
        p(label("L_att_go"))
        p(nop(7))
        self.attention_body()
        p(self.stamp())
        self.o_writes = []; self.s_stores = []
        own = lambda s, nt: V(8 * ((2 * s + nt) % 4), 4)
        hb = lambda s, nt: BF2.sub((s % 2) * 8 + nt * 4, 4)
        ob = lambda s, nt: own(s, nt) if s < 8 else hb(s, nt)
        p(self.o_group(0, 0), self.o_group(0, 1))
        def obload(s, nt):
            return None if s < 8 else self.oload(s, nt)
        def extraP0(s):
            g = [[], [], [], []]
            if s < 7:
                self.bg.extend(self.o_group(s + 1, 0)); self.bg.extend(self.o_group(s + 1, 1))
            if s == 7:
                pre = [valu("v_add_u32", vOb[1], sOblk[1], vLinX), waitfor(self.o_writes), barrier()]
                return g + [pre]
            if s in (15, 23):
                b = (s + 1) >> 3
                return g + [[valu("v_add_u32", vOb[b & 1], sOblk[b], vLinX)]]
            return g
        for s in range(8):
            self.gemm_pass(P00, 32, ACC[1], ob, bload=obload, extra=extraP0, cap=11, bg_start=0, k0=s, k1=s + 1)
            self.flush_bg()
        self.gemm_pass(P00, 32, ACC[1], ob, bload=obload, extra=extraP0, k0=8)
        p(self.stamp())
        p(valu("v_add_u32", vOb[0], sOblk[0], vLinX))
        p(self.oload(0, 0), self.oload(0, 1))
        self.bg.extend(self.s_pack(ACC[1]))
        self.xr = [V(200, 4), V(204, 4)]
        st_steps = [3, 5, 8, 10, 13, 15, 18, 20]
        def extraP1(s):
            g = [[], [], [], []]; pre = []
            if s in (7, 15, 23):
                b = (s + 1) >> 3
                pre += [valu("v_add_u32", vOb[b & 1], sOblk[b], vLinX)]
            if s in st_steps:
                sc, st = self.s_store(ACC[1], 0, st_steps.index(s))
                g[0] = sc; g[1] = [st]
            if s == self.o("s0pub", 27):
                pre += [waitfor(self.s_stores), barrier(), buf_store(V(60), vFlag, srdWS, 0, 1024, "sc1")]
            if s in (26, 27):
                g[0] = g[0] + [buf_load(self.xr[s - 26], vX, srdX, 0, 128 * (s - 26))]
            return g + [pre]
        self.gemm_pass(P10, 32, ACC[2], hb, bload=self.oload, extra=extraP1, bg_start=4, next_reads=False)
        self.flush_bg()
        p(self.stamp())
        self.tail(ACC[2])
        p(drain())
        p(self.stamp(), self.stamp("tail"))
        if self.stamps:
            p(raw("s_memrealtime s[100:101]", "other"))
            p(raw("s_waitcnt lgkmcnt(0)"))
            p(valu("v_mov_b32", V(0), 0))
            p(raw("v_writelane_b32 v0, s98, 16", "valu", wr=["v0"]), raw("v_writelane_b32 v0, s100, 17", "valu", wr=["v0"]))
            for k in range(min(self.nstamp, 12)):
                p(raw(f"v_writelane_b32 v0, s{STAMP0+2*k}, {k}", "valu", wr=["v0"]))
            p(salu("s_lshl_b32", sT0, S(2), 2), salu("s_add_u32", sT0, sT0, sW), salu("s_lshl_b32", sT0, sT0, 8),
              salu("s_add_u32", sT0, sT0, WS_STAMP))
            p(valu("v_lshrrev_b32", V(1), 2, vLin0))
            p(buf_store(V(0), V(1), srdWS, sT0))
            p(drain())
        p(label("L_end"), raw("s_endpgm", "end"))
        self.fallback()
        p(label("L_code_end"), raw("s_endpgm", "end"))


def kd(name, vgpr, accum, sgpr=102):
    return f""".amdhsa_kernel {name}
  .amdhsa_next_free_vgpr {vgpr}
  .amdhsa_next_free_sgpr {sgpr}
  .amdhsa_accum_offset {accum}
  .amdhsa_group_segment_fixed_size 0
  .amdhsa_kernarg_size 96
  .amdhsa_user_sgpr_count 2
  .amdhsa_user_sgpr_kernarg_segment_ptr 1
  .amdhsa_system_sgpr_workgroup_id_x 1
.end_amdhsa_kernel
"""

def build(stamps=False, dumps=(), **opt):
    g = Gen(stamps, dumps, **opt)
    g.main()
    l1, st1 = g.p.finalize()
    hdr = open("cdna_kernels/" + NAME + ".s.ref").read().split("; Override launch")[0]
    k1 = NAME + "_kernel"
    s = hdr
    s += f"; @launch grid=(256,1,1) block=(256,1,1) lds={LDS_BYTES}\n"
    s += '.amdgcn_target "amdgcn-amd-amdhsa--gfx950"\n.text\n'
    s += f".globl {k1}\n.p2align 8\n.type {k1},@function\n{k1}:\n" + "\n".join(l1) + "\n"
    s += '.section .rodata,"a"\n.p2align 6\n' + kd(k1, 512, 256)
    return s, (len(l1), st1)

if __name__ == "__main__":
    import argparse
    ap = argparse.ArgumentParser()
    ap.add_argument("-o", default="cdna_kernels/" + NAME + ".s")
    ap.add_argument("--stamps", action="store_true")
    ap.add_argument("--dumps", default="")
    ap.add_argument("--opt", default="")
    a = ap.parse_args()
    opts = dict(kv.split("=") for kv in a.opt.split(",") if kv)
    s, info = build(a.stamps, [d for d in a.dumps.split(",") if d], **opts)
    open(a.o, "w").write(s)
    print(info, len(s), "bytes")
```

```python
import sys, struct, collections
from asmgen import *

NAME = "recurrent_scan__sliding_block_cached__glu_gated_reglu__prompt"

def f2u(x): return struct.unpack("<I", struct.pack("<f", x))[0]

H_BASE = 0
X_BASE = 28672
W_BASE = 94208
MISC = 159744
LDS_BYTES = 163840
K_SLOT = 8704; K_SLOTS = 3
V_OFF = K_SLOT * K_SLOTS; V_SLOT = 8192; V_SLOTS = 4
SLAB = 2048

WS_B = 0
WS_S = 16 << 20
WS_FLAG = 48 << 20
WS_DUMP = 64 << 20
WS_STAMP = 128 << 20
OOB = 0x7ff00000

sJ, sTB, sW = S(3), S(4), S(5)
srdX, srdQ, srdO, srdG, srdU, srdD, srdK, srdV, srdWS = (S(8 + 4 * i, 4) for i in range(9))
srdP = S(44, 4)
sRing, sOff, sOffK, sOffV = S(48), S(49), S(50), S(51)
sKlds, sVlds = S(52), S(53)
sDbase, sPbase = S(54), S(55)
sBslab, sSslab = S(56), S(57)
sCs, sThr, sFb, sOnes = S(58), S(59), S(60), S(61)
sT0, sT1, sT2, sT3 = S(62), S(63), S(6), S(7)
srdOut, srdDbg = S(64, 4), S(68, 4)
STAMP0 = 72
sRingH = S(96)
sFrag = S(97)
sPblk = [S(20 + i) for i in range(4)]
sOblk = [S(24 + i) for i in range(4)]

ACC = [V(0, 64), V(64, 64), V(128, 64)]
QLO = V(192, 32)
AF = V(224, 16)
vGU1, vGU2, vQ1, vQ2, vDP1, vDP2 = (V(240 + i) for i in range(6))
vTr = [V(246), V(247)]
vLin0, vLinX = V(248), V(249)
vXn = [V(250), V(251)]
vOb = [V(250), V(251)]
vTrX = [V(250), V(251)]
vTrH1 = [V(254), V(255)]
vTrH2 = [V(240), V(241)]
vH = [V(252), V(253)]
vFlag = V(252)
vLinv = [V(254), V(255)]
SB = [V(64, 32), V(96, 32)]
PF = V(128, 16)
NEGM = V(144, 32)
vL = V(176, 4)
vT = V(180, 10)
vKr = [V(32), V(33)]
vVr = [V(34 + i) for i in range(4)]
vK1, vK2, vV1 = V(38), V(39), V(40)
vMf = V(41, 2)
vA = V(44, 8)
OACC = A(0, 128)
KF = A(128, 32)
VF = A(160, 32)
BF = A(192, 16)
BPK = [[A(208, 16), A(224, 16)], [A(240, 16), A(192, 16)]]
BF2 = A(128, 16)
BIN = [[A(192 + (ps * 8 + j) * 4, 4) for j in range(8)] for ps in range(2)]
vStart, vStartOff, vBfl, vFlOff, vX = V(52), V(53), V(54), V(55), V(56)

def qfrag(ks, nt):
    if ks < 4: return QLO.sub((ks * 2 + nt) * 4, 4)
    return V(((ks - 4) * 2 + nt) * 4, 4)

G0, U0, Q00, Q10, D00, D10, P00, P10 = 0, 32, 64, 96, 128, 142, 156, 188


class Gen:
    MEM = ("ds_rd", "ds_wr", "dma", "vload", "vstore")

    def __init__(self, stamps=False, dumps=(), **opt):
        self.opt = opt
        self.p = Prog()
        self.stamps = stamps
        self.dumps = set(dumps)
        self.nstamp = 0
        self.slabs = []
        self.slab_dma = {}
        self.slab_rd = {}
        self.bg = collections.deque()
        self.kd, self.vd = {}, {}

    def o(self, name, default):
        return type(default)(self.opt.get(name, default))

    def stamp(self, where="phase"):
        mode = self.o("stampmode", "phase"); op = "s_memtime"
        if mode == "rt": mode = "phase"; op = "s_memrealtime"
        if not self.stamps or mode != where: return []
        k = self.nstamp; self.nstamp += 1
        if k >= 12: return []
        return [raw(f"{op} s[{STAMP0+2*k}:{STAMP0+2*k+1}]", "other")]

    def dump_lds(self, name, base, nbytes, region):
        if name not in self.dumps: return
        p = self.p
        p(drain(), barrier())
        q = nbytes // 4
        p(salu("s_mul_i32", sT0, S(2), 65536), salu("s_add_u32", sT0, sT0, WS_DUMP + region * (16 << 20)))
        p(salu("s_mul_i32", sT1, sW, q), salu("s_add_u32", sT0, sT0, sT1), salu("s_add_u32", sT1, sT1, base))
        p(valu("v_add_u32", V(238), sT1, vLin0))
        for i in range(q // 1024):
            p(ds_read(V(232, 4), V(238), i * 1024))
            p(salu("s_add_u32", sT2, sT0, i * 1024))
            p(buf_store(V(232, 4), vLin0, srdWS, sT2))
            p(drain())
        p(barrier())

    def build_stream(self):
        sl = []
        for s in range(32): sl.append((srdG, vGU1, vGU2, None, s * 16 * 3584))
        for s in range(32): sl.append((srdU, vGU1, vGU2, None, s * 16 * 3584))
        for ps in range(2):
            for s in range(32): sl.append((srdQ, vQ1, vQ2, None, s * 16 * 8192 + ps * 128))
        for ps in range(2):
            for s in range(14): sl.append((srdD, vDP1, vDP2, sDbase, s * 16384 + ps * 128))
        for ps in range(2):
            for s in range(32): sl.append((srdO, vDP1, vDP2, sPblk[s >> 3], (s & 7) * 16384 + ps * 128))
        self.slabs = sl

    def init_slots(self):
        self.free = [("W", i) for i in range(8)]
        self.slot_of = {}
        self.slot_rd = {}
        self.next_slab = 0
        self.allow = {"W": lambda idx: True, "H": lambda idx: False, "X": lambda idx: False}

    def add_slots(self, region, n, allow):
        self.free += [(region, i) for i in range(n)]
        self.allow[region] = allow

    def can_issue(self):
        idx = self.next_slab
        if idx >= len(self.slabs): return None
        for sl in self.free:
            if self.allow[sl[0]](idx): return sl
        return None

    def issue_next(self, split=False):
        sl = self.can_issue()
        if sl is None: return ([], []) if split else []
        idx = self.next_slab; self.next_slab += 1
        self.free.remove(sl); self.slot_of[idx] = sl
        srd, v1, v2, base, imm = self.slabs[idx]
        reg, i = sl
        if reg == "W": out = [salu("s_add_u32", "m0", sRing, i * SLAB)]
        elif reg == "X": out = [salu("s_add_u32", "m0", sRing, (X_BASE - W_BASE + i * SLAB) & 0xffffffff)]
        else: out = [salu("s_add_u32", "m0", sRingH, i * SLAB)]
        if base is None: out.append(salu("s_mov_b32", sOff, imm))
        else: out.append(salu("s_add_u32", sOff, base, imm))
        dm_ = self.o("dmamod", "").replace("+", " ")
        d1 = dma(v1, srd, sOff, 0, dm_); d2 = dma(v2, srd, sOff, 1024, dm_)
        prev = self.slot_rd.get(sl)
        if prev: d1.dep(prev)
        self.slab_dma[idx] = [d1, d2]
        if split: return out, [d1, d2]
        return out + [d1, d2]

    def release(self, idx):
        sl = self.slot_of[idx]
        self.slot_rd[sl] = self.slab_rd[idx]
        self.free.append(sl)

    def read_slab(self, idx, t, dep=True):
        if idx >= len(self.slabs): return []
        dst = AF.sub((idx % 2) * 8 + t * 4, 4)
        reg, i = self.slot_of[idx]
        base = {"W": vTr, "X": vTrX, "H": vTrH1 if idx < P00 else vTrH2}[reg][t]
        off = i * SLAB
        r1 = ds_read_tr(dst.sub(0, 2), base, off)
        r2 = ds_read_tr(dst.sub(2, 2), base, off + 512)
        if t == 0 and dep: r1.dep(self.slab_dma[idx])
        lst = self.slab_rd.setdefault(idx, [])
        if len(lst) >= 4: lst.clear()
        lst.extend([r1, r2])
        return [r1, r2]

    def fill(self, fixed, cap):
        mem = [i for i in fixed if i.kind in self.MEM]
        rest = [i for i in fixed if i.kind not in self.MEM]
        if self.bg and not isinstance(self.bg[0], list) and self.bg[0].kind in self.MEM and len(mem) < 3:
            mem.append(self.bg.popleft())
        used = sum(i.cost for i in rest if i.kind not in ("salu", "pseudo"))
        lim = cap - (1 if mem else 0)
        while self.bg and used < lim:
            item = self.bg[0]
            if isinstance(item, list):
                self.bg.popleft(); rest += item
                used += sum(i.cost for i in item if i.kind != "salu")
                continue
            if item.kind in self.MEM: break
            self.bg.popleft()
            rest.append(item)
            if item.kind != "salu": used += item.cost
        return mem + rest

    def flush_bg(self):
        while self.bg: self.p(self.bg.popleft())

    def gemm_pass(self, first, nk, acc, bfrag, bload=None, extra=None, cap=5, bg_start=1, next_reads=True,
                  k0=0, k1=None):
        p = self.p
        for s in range(k0, nk if k1 is None else k1):
            sg = first + s
            last = (s == nk - 1)
            nxt = (not last) or next_reads
            a = [AF.sub((sg % 2) * 8 + t * 4, 4) for t in range(2)]
            gaps = [[], [], [], []]
            land = None
            r0 = r1 = []
            if nxt and sg + 1 < len(self.slabs):
                r0 = self.read_slab(sg + 1, 0, dep=False); r1 = self.read_slab(sg + 1, 1)
                land = self.slab_dma[sg + 1]
            b0 = b1 = []
            if bload and not last:
                x0, x1 = bload(s + 1, 0), bload(s + 1, 1)
                b0 = [x0] if x0 else []; b1 = [x1] if x1 else []
            gaps[0] = r0 + b0
            gaps[1] = b1 + r1
            self.release(sg)
            sc, dm = self.issue_next(split=True)
            gaps[1] = gaps[1] + sc; gaps[2] = dm[:1]; gaps[3] = dm[1:]
            more = self.issue_next() if self.can_issue() else []
            pre = []
            if extra:
                ex = extra(s)
                for g in range(4): gaps[g] = gaps[g] + ex[g]
                if len(ex) > 4: pre = ex[4]
            p(pre)
            mode = self.o("stampmode", "phase")
            if mode.startswith("ks") and first == int(mode[2:].split("_")[0]) and s in [int(x) for x in mode.split("_")[1:]]:
                p(self.stamp(mode))
            m = 0
            for t in range(2):
                for nt in range(2):
                    d = acc.sub((t * 2 + nt) * 16, 16)
                    mm = mfma(d, a[t], bfrag(s, nt), 0 if s == 0 else d)
                    if m == 0 and land: mm.dep(land)
                    p(mm)
                    use_bg = (s * 4 + m) >= bg_start
                    p(self.fill(gaps[m], cap) if use_bg else
                      [i for i in gaps[m] if i.kind in self.MEM] + [i for i in gaps[m] if i.kind not in self.MEM])
                    m += 1
            p(more)

    def sel_srd(self, dst, choices):
        out = []
        for i in range(3): out.append(salu("s_mov_b32", dst[i], choices[3][i]))
        for w in (2, 1, 0):
            if str(choices[w]) == str(choices[3]): continue
            out.append(salu("s_cmp_eq_u32", sW, w))
            for i in range(3): out.append(salu("s_cselect_b32", dst[i], choices[w][i], dst[i]))
        out.append(salu("s_mov_b32", dst[3], 0x20000))
        return out

    def one_lane(self, dst, lane, soff, tmp):
        return [salu("s_cmp_eq_u32", sW, 0), salu("s_cselect_b32", sT3, soff, OOB),
                valu("v_mov_b32", dst, OOB), valu("v_cmp_eq_u32", "vcc", 0, lane), valu("v_mov_b32", tmp, sT3),
                valu("v_cndmask_b32", dst, dst, tmp, "vcc")]

    def prologue(self):
        p = self.p
        p(salu("s_cmp_ge_u32", S(2), 256), raw("s_cbranch_scc1 L_end", "branch"))
        p(raw("s_load_dwordx16 s[72:87], s[0:1], 0", "smem"), raw("s_load_dwordx8 s[88:95], s[0:1], 64", "smem"))
        lane = V(232); t0, t1, t2, t3 = V(233), V(234), V(235), V(236)
        p(valu("v_lshrrev_b32", t0, 6, V(0)), valu("v_and_b32", lane, 63, V(0)))
        p(valu("v_readfirstlane_b32", sW, t0))
        p(salu("s_and_b32", sJ, S(2), 7), salu("s_lshr_b32", sTB, S(2), 3))
        p(salu("s_lshl_b32", sT0, sTB, 6), salu("s_lshl_b32", sT1, sW, 4), salu("s_add_u32", sT0, sT0, sT1),
          salu("s_lshl_b32", sT0, sT0, 10))
        p(valu("v_lshrrev_b32", t0, 2, lane), valu("v_lshlrev_b32", t0, 10, t0),
          valu("v_and_b32", t1, 3, lane), valu("v_lshlrev_b32", t1, 4, t1),
          valu("v_add3_u32", t0, t0, t1, sT0))
        p(salu("s_lshl_b32", sT0, sTB, 5), salu("s_add_u32", sT0, sT0, sJ), salu("s_lshl_b32", sT0, sT0, 7),
          salu("s_add_u32", sT0, sT0, WS_FLAG))
        p(self.one_lane(V(237), lane, sT0, V(239)), valu("v_mov_b32", V(238), 0))
        p(raw("s_waitcnt lgkmcnt(0)"))
        def srd(dst, src, nbytes):
            p(salu("s_mov_b32", dst[0], S(src)), salu("s_mov_b32", dst[1], S(src + 1)),
              salu("s_mov_b32", dst[2], nbytes), salu("s_mov_b32", dst[3], 0x20000))
        srd(srdWS, 94, 1 << 28)
        srd(srdX, 72, 2048 * 512 * 2)
        p(buf_store(V(238), V(237), srdWS, 0, 0, "sc1"), buf_store(V(238), V(237), srdWS, 0, 1024, "sc1"),
          buf_store(V(238), V(237), srdWS, 0, 2048, "sc1"))
        self.xloads = []
        for q in range(16):
            self.xloads.append(p(buf_load(V(4 * q, 4), t0, srdX, 0, q * 64)))
        srd(srdG, 84, 512 * 1792 * 2); srd(srdU, 86, 512 * 1792 * 2)
        p(salu("s_lshl_b32", sRing, sW, 14), salu("s_add_u32", sRing, sRing, W_BASE))
        row, swz = t1, t2
        p(valu("v_lshrrev_b32", row, 3, lane))
        p(valu("v_lshrrev_b32", t3, 4, lane), valu("v_and_b32", t3, 1, t3))
        p(valu("v_bfe_u32", swz, lane, 2, 1), valu("v_xor_b32", swz, swz, t3), valu("v_lshlrev_b32", swz, 6, swz))
        p(valu("v_and_b32", t3, 3, lane), valu("v_lshlrev_b32", t3, 4, t3), valu("v_add_u32", swz, swz, t3))
        p(salu("s_mul_i32", sT0, sJ, 448), salu("s_and_b32", sT1, sJ, 1),
          salu("s_lshl_b32", sT2, sW, 7), salu("s_add_u32", sT2, sT0, sT2))
        p(salu("s_lshl_b32", sT3, sT1, 6), salu("s_add_u32", sT2, sT2, sT3))
        p(salu("s_cmp_eq_u32", sW, 3), salu("s_cselect_b32", sT3, sT1, 0), salu("s_mul_i32", sT3, sT3, 512),
          salu("s_sub_u32", sT2, sT2, sT3))
        p(valu("v_mul_u32_u24", vGU1, 3584, row), valu("v_add3_u32", vGU1, vGU1, swz, sT2),
          valu("v_add_u32", vGU2, 8 * 3584 - 1024, vGU1))
        p(salu("s_mul_i32", sRingH, sW, 3 * SLAB))
        self.add_slots("H", 3, lambda idx: idx < U0)
        while self.can_issue(): p(self.issue_next())
        srd(srdK, 74, 8 * 2048 * 128 * 2); srd(srdV, 76, 8 * 2048 * 128 * 2)
        srd(srdQ, 78, 512 * 4096 * 2); srd(srdO, 80, 4096 * 512 * 2)
        srd(srdD, 88, 1792 * 512 * 2)
        srd(srdOut, 90, 2048 * 512 * 2); srd(srdDbg, 92, 256)
        if self.o("pf", 1):
            ins, lds = self.pf_kind("G", [V(222), V(223)])
            p(ins, lds)
            ins, lds = self.pf_kind("U", [V(220), V(221)])
            p(ins, lds, self.pf_code(lane))
        p(salu("s_and_b32", sT1, sJ, 1))
        p(salu("s_lshl_b32", sT2, sW, 1), salu("s_add_u32", sT2, sT2, sT1))
        p(salu("s_lshl_b32", sT3, sT2, 12), salu("s_add_u32", sT0, sT3, 4096))
        p(salu("s_cmp_eq_u32", sT2, 6), salu("s_cselect_b32", sT0, MISC, sT0))
        p(salu("s_cmp_eq_u32", sT2, 7), salu("s_cselect_b32", sT3, MISC, sT3), salu("s_cselect_b32", sT0, 0, sT0))
        p(valu("v_lshlrev_b32", vLin0, 4, lane), valu("v_add_u32", vLinX, X_BASE, vLin0))
        p(valu("v_add_u32", vH[0], sT3, vLin0), valu("v_add_u32", vH[1], sT0, vLin0))
        p(salu("s_mul_i32", sDbase, sJ, 224 * 1024), salu("s_mul_i32", sPbase, sJ, 512 * 1024))
        p(salu("s_lshl_b32", sT0, sTB, 3), salu("s_add_u32", sT0, sT0, sJ), salu("s_lshl_b32", sT0, sT0, 16),
          salu("s_lshl_b32", sT1, sW, 14), salu("s_add_u32", sBslab, sT0, sT1),
          salu("s_add_u32", sSslab, sBslab, WS_S))
        p(salu("s_mov_b32", sCs, f2u(1.4426950408889634 / 128 ** 0.5)), salu("s_mov_b32", sThr, f2u(2.0 ** 64)),
          salu("s_mov_b32", sFb, 0), salu("s_mov_b32", sOnes, 0x3f803f80))
        p(salu("s_mul_i32", sKlds, sW, 2 * 1088), salu("s_add_u32", sKlds, sKlds, X_BASE),
          salu("s_lshl_b32", sVlds, sW, 11), salu("s_add_u32", sVlds, sVlds, X_BASE + V_OFF))
        p(salu("s_lshl_b32", sT0, sJ, 10), salu("s_lshl_b32", sT1, sW, 8), salu("s_add_u32", sT0, sT0, sT1))
        p(valu("v_lshlrev_b32", vQ1, 13, row), valu("v_add3_u32", vQ1, vQ1, swz, sT0),
          valu("v_add_u32", vQ2, 8 * 8192 - 1024, vQ1))
        p(valu("v_lshlrev_b32", vDP1, 10, row), valu("v_add3_u32", vDP1, vDP1, swz, sT1),
          valu("v_add_u32", vDP2, 8 * 1024 - 1024, vDP1))
        g1, r, c = t0, t1, t2
        p(valu("v_lshrrev_b32", g1, 5, lane), valu("v_lshlrev_b32", g1, 3, g1))
        p(valu("v_bfe_u32", r, lane, 2, 2), valu("v_add_u32", g1, g1, r), valu("v_lshlrev_b32", g1, 7, g1))
        p(valu("v_bfe_u32", t3, lane, 4, 1), valu("v_lshlrev_b32", t3, 5, t3), valu("v_add_u32", g1, g1, t3))
        p(valu("v_and_b32", c, 1, lane), valu("v_lshlrev_b32", c, 4, c),
          valu("v_bfe_u32", t3, lane, 1, 1), valu("v_lshlrev_b32", t3, 3, t3), valu("v_add3_u32", g1, g1, c, t3))
        p(valu("v_lshrrev_b32", r, 1, r), valu("v_lshlrev_b32", r, 6, r))
        p(valu("v_add3_u32", vTr[0], g1, r, sRing))
        p(valu("v_xor_b32", r, 64, r), valu("v_add3_u32", vTr[1], g1, r, sRing))
        p(salu("s_sub_u32", sT0, sRingH, sRing))
        for t in range(2): p(valu("v_add_u32", vTrH1[t], sT0, vTr[t]))
        p(valu("v_lshrrev_b32", t0, 5, lane), valu("v_lshlrev_b32", t0, 1, t0))
        p(valu("v_xor_b32", t1, lane, t0), valu("v_lshlrev_b32", t1, 4, t1), valu("v_add_u32", vXn[0], X_BASE, t1))
        p(valu("v_xor_b32", t1, 64, t1), valu("v_add_u32", vXn[1], X_BASE, t1))
        self.lane = lane

    def pf_slab(self, srd, v1, v2, soff_ins, dst):
        m = "nt" if self.o("pfnt", 0) else ""
        return soff_ins, [buf_load(dst[0], v1, srd, sT2, 0, m), buf_load(dst[1], v2, srd, sT2, 1024, m)]

    def pf_kind(self, kind, dst):
        if kind == "G": return self.pf_slab(srdG, vGU1, vGU2, [salu("s_mul_i32", sT2, sTB, 16 * 3584)], dst)
        if kind == "U": return self.pf_slab(srdU, vGU1, vGU2, [salu("s_mul_i32", sT2, sTB, 16 * 3584)], dst)
        if kind == "Q0": return self.pf_slab(srdQ, vQ1, vQ2, [salu("s_lshl_b32", sT2, sTB, 17)], dst)
        if kind == "Q1": return self.pf_slab(srdQ, vQ1, vQ2, [salu("s_lshl_b32", sT2, sTB, 17), salu("s_add_u32", sT2, sT2, 128)], dst)
        if kind == "D":
            ins = [salu("s_lshl_b32", sT2, sTB, 14), salu("s_cmp_ge_u32", sTB, 14),
                   salu("s_cselect_b32", sT1, 14 * 16384 - 128, 0), salu("s_sub_u32", sT2, sT2, sT1),
                   salu("s_add_u32", sT2, sT2, sDbase), salu("s_cmp_ge_u32", sTB, 28), salu("s_cselect_b32", sT2, OOB, sT2)]
            return self.pf_slab(srdD, vDP1, vDP2, ins, dst)
        if kind in ("P0", "P1"):
            ins = [salu("s_lshl_b32", sT2, sTB, 14), salu("s_add_u32", sT2, sT2, sPbase)]
            if kind == "P1": ins.append(salu("s_add_u32", sT2, sT2, 128))
            return self.pf_slab(srdO, vDP1, vDP2, ins, dst)

    def pf_kv(self, tmp, dst):
        ins = [salu("s_lshr_b32", sT2, sTB, 1), salu("s_lshl_b32", sT2, sT2, 13), salu("s_lshl_b32", sT1, sW, 11),
               salu("s_add_u32", sT2, sT2, sT1), salu("s_mul_i32", sT1, sJ, 2048 * 256), salu("s_add_u32", sT2, sT2, sT1),
               salu("s_add_u32", sT2, sT2, 1536 * 256),
               valu("v_lshlrev_b32", tmp, 3, vLin0), valu("v_and_b32", tmp, 0x780, tmp),
               salu("s_and_b32", sT1, sTB, 1), salu("s_cmp_eq_u32", sT1, 0)]
        for i in range(3): ins.append(salu("s_cselect_b32", srdP[i], srdK[i], srdV[i]))
        ins.append(salu("s_mov_b32", srdP[3], 0x20000))
        return ins, [buf_load(dst, tmp, srdP, sT2, 0, "nt" if self.o("pfnt", 0) else "")]

    def pf_batch(self, slot, name):
        out = [salu("s_and_b32", sT0, sTB, 3), salu("s_cmp_eq_u32", sT0, slot), raw(f"s_cbranch_scc0 L_pf{name}", "branch")]
        if self.o("pfw3", 0): out += [salu("s_cmp_eq_u32", sW, 3), raw(f"s_cbranch_scc0 L_pf{name}", "branch")]
        dst = [V(208 + i) for i in range(8)]
        k = 0
        for kind in ("Q0", "Q1", "D"):
            ins, lds = self.pf_kind(kind, dst[k:k + 2]); k += 2
            out += ins + lds
        ins, lds = self.pf_kv(V(216), dst[k])
        out += ins + lds
        for i in out:
            if i.kind == "vload": i.optional = True
        out.append(label(f"L_pf{name}"))
        return out

    def pf_code(self, lane):
        t0 = V(180)
        out = [salu("s_lshl_b32", sT0, sTB, 2), salu("s_add_u32", sT0, sT0, sW), salu("s_lshl_b32", sT0, sT0, 10),
               valu("v_and_b32", t0, 7, lane), valu("v_lshlrev_b32", t0, 7, t0), valu("v_add_u32", t0, sT0, t0)]
        srdC = S(72, 4)
        out += [label("L_pc"), raw("s_getpc_b64 s[72:73]", "salu", wr=["s72", "s73"]),
                raw("s_mov_b32 s74, L_code_end-L_pc-4", "salu", wr=["s74"]), salu("s_mov_b32", srdC[3], 0x20000)]
        out += [buf_load(V(181), t0, srdC)]
        return out

    def layernorm(self):
        p = self.p; lane = self.lane
        a0, a1, b0, b1 = V(65), V(66), V(67), V(69)
        first = True
        for i in range(64):
            x = V(i); sa = (a0, a1)[i & 1]; sb = (b0, b1)[i & 1]
            p(valu("v_dot2_f32_bf16", sa, x, sOnes, 0 if i < 2 else sa))
            p(valu("v_dot2_f32_bf16", sb, x, x, 0 if i < 2 else sb))
        p(salu("s_lshl_b32", sT0, sTB, 3), self.one_lane(V(77), lane, sT0, V(79)), valu("v_mov_b32", V(78), 1))
        p(raw(f"buffer_atomic_add {V(78)}, {V(77)}, {srdDbg}, 0 offen sc1", "vatomic", rd=["v78", "v77"] + srdDbg.regs()))
        if self.o("pf", 1): p(self.pf_batch(0, "a"))
        p(valu("v_add_f32", a0, a0, a1), valu("v_add_f32", b0, b0, b1))
        for perm in ("[1,0,3,2]", "[2,3,0,1]"):
            p(valu("v_add_f32_dpp", a0, a0, a0, mods=f"quad_perm:{perm} row_mask:0xf bank_mask:0xf"))
            p(valu("v_add_f32_dpp", b0, b0, b0, mods=f"quad_perm:{perm} row_mask:0xf bank_mask:0xf"))
        mean, var, rs, nb = V(68), V(71), V(70), V(72)
        p(valu("v_mul_f32", mean, f2u(1 / 512), a0), valu("v_mul_f32", var, f2u(1 / 512), b0))
        p(valu("v_fma_f32", var, Neg(mean), mean, var), valu("v_max_f32", var, 0, var),
          valu("v_add_f32", var, f2u(1e-5), var), valu("v_rsq_f32", rs, var))
        p(valu("v_mul_f32", nb, mean, rs), valu("v_sub_f32", nb, 0, nb))
        wa, t0, t1 = V(74), V(75), V(76)
        p(valu("v_lshrrev_b32", t0, 2, lane))
        p(salu("s_and_b32", sT0, sW, 1), salu("s_lshl_b32", sT0, sT0, 4))
        p(valu("v_add_u32", t0, sT0, t0))
        p(valu("v_and_b32", t1, 1, lane), valu("v_lshlrev_b32", t1, 5, t1), valu("v_add_u32", t0, t0, t1))
        p(valu("v_and_b32", t1, 3, lane), valu("v_lshlrev_b32", t1, 1, t1), valu("v_xor_b32", t0, t0, t1),
          valu("v_lshlrev_b32", t0, 4, t0))
        p(valu("v_bfe_u32", t1, lane, 1, 1), valu("v_lshlrev_b32", t1, 11, t1))
        p(salu("s_lshr_b32", sT0, sW, 1), salu("s_lshl_b32", sT0, sT0, 10), salu("s_add_u32", sT0, sT0, X_BASE))
        p(valu("v_add3_u32", wa, t0, t1, sT0))
        wr = []
        for q in range(16):
            tt = [V(80 + 2 * ((4 * q + i) % 8), 2) for i in range(4)]
            for i in range(4):
                x = V(4 * q + i)
                p(valu("v_lshlrev_b32", tt[i][0], 16, x), valu("v_and_b32", tt[i][1], 0xffff0000, x))
            for i in range(4):
                p(valu("v_pk_fma_f32", tt[i], tt[i], V(70, 2), V(72, 2), mods="op_sel_hi:[1,0,0]"))
            for i in range(4):
                p(valu("v_cvt_pk_bf16_f32", V(4 * q + i), tt[i][0], tt[i][1]))
            wr.append(p(ds_write(wa, V(4 * q, 4), q * 4096)))
        p(waitfor(wr), barrier())

    def h_epi(self, G, U):
        out = []; self.h_writes = []
        for t in range(2):
            for nt in range(2):
                g = G.sub((t * 2 + nt) * 16, 16); u = U.sub((t * 2 + nt) * 16, 16)
                for s in range(2):
                    for i in range(8):
                        out.append(valu("v_max_f32", g[8 * s + i], 0, g[8 * s + i]))
                    for i in range(8):
                        out.append(valu("v_mul_f32", g[8 * s + i], g[8 * s + i], u[8 * s + i]))
                    for i in range(4):
                        out.append(valu("v_cvt_pk_bf16_f32", u[8 * s + i], g[8 * s + 2 * i], g[8 * s + 2 * i + 1]))
                    mode = self.o("hw", "b128")
                    if mode == "b64":
                        ws = [ds_write(vH[t], u.sub(8 * s, 2), (s * 2 + nt) * 1024), ds_write(vH[t], u.sub(8 * s + 2, 2), (s * 2 + nt) * 1024 + 8)]
                        self.h_writes += ws; out += ws
                    else:
                        w = ds_write(vH[t], u.sub(8 * s, 4), (s * 2 + nt) * 1024)
                        self.h_writes.append(w)
                        if mode == "b128": out.append(w)
        return out

    def q_epi(self, acc, ps):
        out = []
        for t in range(2):
            for nt in range(2):
                a = acc.sub((t * 2 + nt) * 16, 16)
                for s in range(2):
                    d = qfrag(ps * 4 + 2 * t + s, nt)
                    for i in range(8):
                        out.append(valu("v_mul_f32", a[8 * s + i], sCs, a[8 * s + i]))
                    for i in range(4):
                        out.append(valu("v_cvt_pk_bf16_f32", d[i], a[8 * s + 2 * i], a[8 * s + 2 * i + 1]))
        return out

    def b_pack(self, acc, ps):
        out = []
        for t in range(2):
            for nt in range(2):
                a = acc.sub((t * 2 + nt) * 16, 16)
                for s in range(2):
                    d = a.sub(8 * s, 4); k = BPK[ps][t].sub((s * 2 + nt) * 4, 4)
                    for i in range(4):
                        out.append(valu("v_cvt_pk_bf16_f32", d[i], a[8 * s + 2 * i], a[8 * s + 2 * i + 1]))
                    for i in range(4):
                        out.append(valu("v_accvgpr_write_b32", k[i], d[i]))
        return out

    def b_store(self, n):
        ps, t, f = n >> 3, (n >> 2) & 1, n & 3
        st = buf_store(BPK[ps][t].sub(f * 4, 4), vLin0, srdWS, sT3, f * 1024, "sc1")
        self.b_stores.append(st)
        return [salu("s_add_u32", sT3, sBslab, ps * 8192 + t * 4096)], st

    def s_pack(self, acc):
        out = []
        for t in range(2):
            for nt in range(2):
                a = acc.sub((t * 2 + nt) * 16, 16)
                for s in range(2):
                    d = a.sub(8 * s, 4)
                    for i in range(4):
                        out.append(valu("v_cvt_pk_bf16_f32", d[i], a[8 * s + 2 * i], a[8 * s + 2 * i + 1]))
        return out

    def s_store(self, acc, ps, n):
        t, f = n >> 2, n & 3
        s, nt = f >> 1, f & 1
        st = buf_store(acc.sub((t * 2 + nt) * 16 + 8 * s, 4), vLin0, srdWS, sT3, f * 1024, "sc1")
        self.s_stores.append(st)
        return [salu("s_add_u32", sT3, sSslab, ps * 8192 + t * 4096)], st

    def o_group(self, s, nt):
        t, h = s >> 1, s & 1
        tmp = V(8 * ((2 * s + nt) % 4), 8)
        src = OACC.sub((t * 2 + nt) * 16 + 8 * h, 8)
        out = []
        for i in range(8): out.append(valu("v_accvgpr_read_b32", tmp[i], src[i]))
        for i in range(8): out.append(valu("v_mul_f32", tmp[i], vLinv[nt], tmp[i]))
        for i in range(4): out.append(valu("v_cvt_pk_bf16_f32", tmp[i], tmp[2 * i], tmp[2 * i + 1]))
        w = ds_write(vOb[0], tmp.sub(0, 4), (s * 2 + nt) * 1024)
        self.o_writes.append(w); out.append(w)
        return out

    def att_addr(self):
        out = []
        l, a, b, c = vA[0], vA[1], vA[2], vA[3]
        out += [valu("v_lshrrev_b32", l, 4, vLin0)]
        out += [salu("s_mul_i32", sT0, sJ, 2048 * 256), salu("s_add_u32", sT0, sT0, 1536 * 256),
                salu("s_lshl_b32", sT1, sW, 11), salu("s_add_u32", sT0, sT0, sT1)]
        out += [valu("v_lshrrev_b32", a, 4, l), valu("v_and_b32", b, 15, l), valu("v_xor_b32", b, b, a),
                valu("v_lshlrev_b32", b, 4, b), valu("v_lshlrev_b32", c, 8, a), valu("v_add3_u32", vK1, b, c, sT0),
                valu("v_add_u32", vK2, 1024, vK1), valu("v_subrev_u32", vK2, 1088, vK2)]
        out += [valu("v_bfe_u32", b, l, 2, 2), valu("v_xor_b32", b, b, a), valu("v_lshlrev_b32", b, 6, b),
                valu("v_add3_u32", vV1, b, c, sT0), valu("v_and_b32", b, 3, l), valu("v_lshlrev_b32", b, 4, b),
                valu("v_add_u32", vV1, vV1, b)]
        out += [valu("v_bfe_u32", a, l, 4, 1), valu("v_lshlrev_b32", a, 2, a),
                valu("v_bfe_u32", b, l, 2, 1), valu("v_lshlrev_b32", b, 1, b), valu("v_add_u32", a, a, b),
                valu("v_bfe_u32", b, l, 3, 1), valu("v_add_u32", a, a, b),
                valu("v_mul_u32_u24", a, 1088, a),
                valu("v_and_b32", b, 3, l), valu("v_lshlrev_b32", c, 8, b), valu("v_add_u32", a, a, c),
                valu("v_lshrrev_b32", c, 5, l), valu("v_xor_b32", c, c, b),
                valu("v_lshlrev_b32", c, 4, c), valu("v_add_u32", vKr[0], a, c), valu("v_add_u32", vKr[0], X_BASE, vKr[0]),
                valu("v_xor_b32", c, 32, c), valu("v_add_u32", vKr[1], a, c), valu("v_add_u32", vKr[1], X_BASE, vKr[1])]
        out += [valu("v_lshrrev_b32", a, 5, l), valu("v_lshlrev_b32", a, 3, a), valu("v_bfe_u32", b, l, 2, 2),
                valu("v_add_u32", a, a, b), valu("v_lshlrev_b32", a, 8, a),
                valu("v_bfe_u32", c, l, 4, 1), valu("v_lshlrev_b32", c, 5, c), valu("v_add_u32", a, a, c),
                valu("v_and_b32", c, 1, l), valu("v_lshlrev_b32", c, 4, c), valu("v_add_u32", a, a, c),
                valu("v_bfe_u32", c, l, 1, 1), valu("v_lshlrev_b32", c, 3, c), valu("v_add_u32", a, a, c),
                valu("v_add_u32", a, X_BASE + V_OFF, a), valu("v_lshlrev_b32", b, 6, b)]
        for t in range(4):
            out += [valu("v_xor_b32", c, t * 64, b), valu("v_add_u32", vVr[t], a, c)]
        out += [valu("v_mov_b32", vMf[0], 0xff800000), valu("v_mov_b32", vMf[1], 0xff800000)]
        out += [salu("s_sub_u32", sT0, sRingH, sRing)]
        for t in range(2): out.append(valu("v_add_u32", vTrH2[t], sT0, vTr[t]))
        for b_ in range(4):
            out += [salu("s_add_u32", sT0, sW, b_), salu("s_and_b32", sT0, sT0, 3), salu("s_lshl_b32", sOblk[b_], sT0, 14),
                    salu("s_lshl_b32", sT0, sT0, 17), salu("s_add_u32", sPblk[b_], sT0, sPbase)]
        return out

    def k_dma(self, u):
        if u > 15: return []
        o = [salu("s_add_u32", "m0", sKlds, (u % K_SLOTS) * K_SLOT), salu("s_mov_b32", sOffK, u * 8192),
             dma(vK1, srdK, sOffK, 0), dma(vK2, srdK, sOffK, 1088)]
        self.kd[u] = o[2:]
        return o
    def v_dma(self, u):
        if u > 15: return []
        o = [salu("s_add_u32", "m0", sVlds, (u % V_SLOTS) * V_SLOT), salu("s_mov_b32", sOffV, u * 8192),
             dma(vV1, srdV, sOffV, 0), dma(vV1, srdV, sOffV, 1024)]
        self.vd[u] = o[2:]
        return o
    def k_reads(self, u):
        return [ds_read(KF.sub(4 * ks, 4), vKr[ks & 1], (u % K_SLOTS) * K_SLOT + (ks >> 1) * 64) for ks in range(8)]
    def v_reads(self, u):
        out = []
        for s in range(2):
            for t in range(4):
                d = VF.sub((s * 4 + t) * 4, 4)
                off = (u % V_SLOTS) * V_SLOT + s * 4096
                out += [ds_read_tr(d.sub(0, 2), vVr[t], off), ds_read_tr(d.sub(2, 2), vVr[t], off + 1024)]
        return out
    def qk_mfmas(self, u, c0):
        sb = SB[u % 2]; out = []
        for ks in range(8):
            for nt in range(2):
                d = sb.sub(16 * nt, 16)
                c = d if ks else (c0 if c0 == 0 else c0.sub(16 * nt, 16))
                out.append(mfma(d, KF.sub(4 * ks, 4), qfrag(ks, nt), c))
        return out
    def pv_mfmas(self, u):
        out = []
        for s in range(2):
            for nt in range(2):
                for t in range(4):
                    d = OACC.sub((t * 2 + nt) * 16, 16)
                    out.append(mfma(d, VF.sub((s * 4 + t) * 4, 4), PF.sub((s * 2 + nt) * 4, 4), 0 if (u == 0 and s == 0) else d))
        return out
    def softmax_items(self, u):
        sb = SB[u % 2]; seq = []
        for f in range(4):
            s, nt = f >> 1, f & 1
            for i in range(8): seq.append((f, nt, sb[16 * nt + 8 * s + i], i))
        groups = []
        for g in range(35):
            it = []
            if g < 32:
                it.append(valu("v_exp_f32", seq[g][2], seq[g][2]))
            if 1 <= g <= 32:
                f, nt, r, i = seq[g - 1]
                acc = vL[nt * 2 + ((i + 1) & 1)]
                if u == 0 and f < 2 and i < 2: it.append(valu("v_mov_b32", acc, r))
                else: it.append(valu("v_add_f32", acc, acc, r))
            if g >= 4 and g % 2 == 0:
                a = (g - 4) // 2
                f, nt, r, i = seq[2 * a]
                it.append(valu("v_cvt_pk_bf16_f32", PF[f * 4 + (i >> 1)], r, seq[2 * a + 1][2]))
            groups.append(it)
        return groups

    def att_iter(self, u, pre, tail=None):
        p = self.p
        need = []
        if u + 1 <= 15: need += self.kd[u + 1]
        need += self.vd[u]
        p(self.stamp("att"))
        sync = [waitfor(need), barrier()]
        mf = []
        if u >= 1: mf += self.pv_mfmas(u - 1)
        if u + 1 <= 15: mf += self.qk_mfmas(u + 1, NEGM)
        else: mf += self.pv_mfmas(15)
        n = len(mf)
        sm = self.softmax_items(u)
        kr = self.k_reads(u + 1) if u + 1 <= 15 else []
        vr = self.v_reads(u)
        dm = self.k_dma(u + 3) + self.v_dma(u + 2)
        bsl = [self.b_store(2 * u), self.b_store(2 * u + 1)] if u < 8 else []
        if u == 9: sync = [waitfor(need, self.b_stores), barrier(), buf_store(V(60), vFlag, srdWS, 0, 0, "sc1")]
        mem = [[] for _ in range(n)]
        alu = [[] for _ in range(n)]
        if u == 0:
            p(sync); p(kr); p(pre[:8])
            for bs, bst in bsl: p(bs, bst)
            p(dm)
            rest = pre[8:]
            for g in range(n):
                mem[g] = vr[g:g + 1]
                alu[g] = (rest[3 * g:3 * g + 3] if g < 8 else []) + sm[2 * g] + sm[2 * g + 1]
            alu[n - 1] += sm[32] + sm[33] + sm[34]
        elif u == 15:
            mem[0] = sync
            for i, (sc, ld) in enumerate(self.b_loads[12:16]):
                alu[1 + 2 * i].append(sc); mem[2 + 2 * i].append(ld)
            for k in range(35): alu[(k * 4) // 5] += sm[k]
            for t in range(4):
                mem[4 + t] += vr[2 * t:2 * t + 2]
                mem[12 + t] += vr[8 + 2 * t:8 + 2 * t + 2]
            for g, items in tail.items(): alu[g] += items
        else:
            mem[0] = sync
            for k in range(35): alu[min(k, 31)] += sm[k]
            for i, r in enumerate(kr): mem[1 + i].append(r)
            for i, r in enumerate(vr): mem[16 + i].append(r)
            for i, (bs, bst) in enumerate(bsl):
                alu[17 + 4 * i] += bs; mem[18 + 4 * i].append(bst)
            if u == 11:
                mem[2].append(buf_load(vStart, vStartOff, srdDbg, 0, 0, "sc1"))
                mem[3].append(buf_load(vBfl, vFlOff, srdWS, 0, 0, "sc1"))
            if u >= 12:
                for i, (sc, ld) in enumerate(self.b_loads[4 * (u - 12):4 * (u - 12) + 4]):
                    alu[17 + 3 * i].append(sc); mem[18 + 3 * i].append(ld)
            for i in range(0, len(dm), 4):
                g = 9 + i
                alu[g] += dm[i:i + 2]; mem[g + 1].append(dm[i + 2]); mem[g + 2].append(dm[i + 3])
            if u == 2:
                self.allow["H"] = lambda idx: idx >= P00
                g = 17
                while self.can_issue():
                    sc, d = self.issue_next(split=True)
                    alu[g] += sc; mem[g + 1].append(d[0]); mem[g + 2].append(d[1]); g += 3
            if u == 1 and self.o("pf", 1):
                pre_, ld = self.pf_kind("P1", [vA[4], vA[5]])
                alu[24] += pre_
                mem[26].append(ld[0]); mem[27].append(ld[1])
        for g in range(n):
            p(mf[g]); p(mem[g]); p(alu[g])

    def attention_body(self):
        p = self.p
        sb = SB[0]
        m = [vT[0], vT[1]]; tt = [vT[2], vT[3]]
        for nt in range(2):
            r = sb.sub(16 * nt, 16)
            p(valu("v_max3_f32", m[nt], r[0], r[1], r[2]))
            for i in range(3, 15, 2): p(valu("v_max3_f32", m[nt], m[nt], r[i], r[i + 1]))
            p(valu("v_max_f32", m[nt], m[nt], r[15]))
        for nt in range(2): p(valu("v_mov_b32", tt[nt], m[nt]))
        for nt in range(2): p(valu("v_permlane32_swap_b32", m[nt], tt[nt]))
        for nt in range(2): p(valu("v_max3_f32", m[nt], m[nt], tt[nt], vMf[nt]))
        for nt in range(2): p(valu("v_sub_f32", NEGM[16 * nt], 0, m[nt]))
        for i in range(1, 16):
            for nt in range(2): p(valu("v_mov_b32", NEGM[16 * nt + i], NEGM[16 * nt]))
        pre0 = [valu("v_add_f32", sb[16 * nt + 8 * s + i], sb[16 * nt + 8 * s + i], NEGM[16 * nt + ((i + 1) & 3)])
                for s in range(2) for nt in range(2) for i in range(8)]
        self.b_stores = []
        self.b_loads = self.part_loads(WS_B, 0, BIN[0]) + self.part_loads(WS_B, 1, BIN[1])
        for u in range(15):
            if u == 12:
                p(salu("s_mov_b32", sT2, 0))
                self.poll("start", lambda: buf_load(vStart, vStartOff, srdDbg, 0, 0, "sc1"), vStart, 8, "v_cmp_le_u32")
                self.poll("bflag", lambda: buf_load(vBfl, vFlOff, srdWS, 0, 0, "sc1"), vBfl, 1)
            self.att_iter(u, pre0 if u == 0 else [])
        l = [vT[0], vT[1]]; tt = [vT[2], vT[3]]
        fin = []
        for nt in range(2): fin.append(valu("v_add_f32", l[nt], vL[2 * nt], vL[2 * nt + 1]))
        for nt in range(2): fin.append(valu("v_mov_b32", tt[nt], l[nt]))
        fin.append(salu("s_lshl_b32", sT1, sW, 2)); fin.append(salu("s_add_u32", sT1, sT1, MISC))
        for nt in range(2): fin.append(valu("v_permlane32_swap_b32", l[nt], tt[nt]))
        fin.append(valu("v_mov_b32", vT[5], sT1))
        for nt in range(2): fin.append(valu("v_add_f32", l[nt], l[nt], tt[nt]))
        fin.append(valu("v_max_f32", tt[0], l[0], l[1]))
        fin.append(valu("v_cmp_nge_f32", "vcc", sThr, tt[0]))
        for nt in range(2): fin.append(valu("v_rcp_f32", vLinv[nt], l[nt]))
        fin2 = [salu("s_cmp_lg_u64", "vcc", 0), salu("s_cselect_b32", sT0, 1, 0), valu("v_mov_b32", vT[4], sT0)]
        fin2.append(ds_write(vT[5], vT[4], 0))
        flags = V(vT.n + 6, 4)
        fin3 = [valu("v_mov_b32", vT[5], MISC), drain(vm=False), barrier(), ds_read(flags, vT[5], 0)]
        extra = self.read_slab(P00, 0) + self.read_slab(P00, 1)
        extra.append(valu("v_add_u32", vOb[0], sOblk[0], vLinX))
        self.att_iter(15, [], tail={26: fin[:8], 27: fin[8:], 28: fin2, 29: fin3, 30: extra[:2], 31: extra[2:]})
        p(valu("v_or3_b32", flags[0], flags[0], flags[1], flags[2]), valu("v_or_b32", flags[0], flags[0], flags[3]))
        p(valu("v_readfirstlane_b32", sT0, flags[0]))
        p(salu("s_cmp_gt_u32", sT0, sFb), raw("s_cbranch_scc1 L_fallback", "branch"))

    def fallback(self):
        p = self.p
        p(label("L_fallback"))
        p(drain(), barrier())
        p(salu("s_mov_b32", sFb, 1), salu("s_mov_b32", sBslab, OOB))
        for nt in range(2): p(valu("v_mov_b32", vMf[nt], 0xff800000))
        p(salu("s_mov_b32", sT2, 0))
        p(label("L_fb_loop"))
        d = [dma(vK1, srdK, sT2, 0), dma(vK2, srdK, sT2, 1088)]
        p(salu("s_mov_b32", "m0", sKlds), nop(0), d)
        p(drain(), barrier())
        p([ds_read(KF.sub(4 * ks, 4), vKr[ks & 1], (ks >> 1) * 64) for ks in range(8)])
        p(self.qk_mfmas(0, 0))
        for nt in range(2):
            r = SB[0].sub(16 * nt, 16)
            for i in range(0, 16, 2): p(valu("v_max3_f32", vMf[nt], vMf[nt], r[i], r[i + 1]))
        for nt in range(2): p(valu("v_mov_b32", vT[2 + nt], vMf[nt]))
        for nt in range(2): p(valu("v_permlane32_swap_b32", vMf[nt], vT[2 + nt]))
        for nt in range(2): p(valu("v_max_f32", vMf[nt], vMf[nt], vT[2 + nt]))
        p(drain(), barrier())
        p(salu("s_add_u32", sT2, sT2, 8192), salu("s_cmp_lt_u32", sT2, 16 * 8192), raw("s_cbranch_scc1 L_fb_loop", "branch"))
        for u in range(3): p(self.k_dma(u))
        for u in range(2): p(self.v_dma(u))
        p(drain(), barrier())
        p(self.k_reads(0))
        p(drain())
        p(raw("s_branch L_att", "branch"))

    def hload(self, s, nt):
        return ds_read(BF.sub((s % 2) * 8 + nt * 4, 4), vLin0, H_BASE + (s * 2 + nt) * 1024)
    def oload(self, s, nt):
        return ds_read(BF2.sub((s % 2) * 8 + nt * 4, 4), vOb[(s >> 3) & 1], ((s & 7) * 2 + nt) * 1024)

    def reduce8(self, src, acc):
        out = []
        for j in range(8):
            for i in range(4):
                out.append(valu("v_dot2_f32_bf16", acc[2 * i], src[j][i], S(48), 0 if j == 0 else acc[2 * i]))
                out.append(valu("v_dot2_f32_bf16", acc[2 * i + 1], src[j][i], S(49), 0 if j == 0 else acc[2 * i + 1]))
        return out

    def poll(self, name, load, reg, want, op="v_cmp_eq_u32"):
        p = self.p
        p(label(f"L_{name}_chk"))
        p(valu(op, "vcc", want, reg))
        p(salu("s_add_u32", sT2, sT2, 1))
        p(salu("s_cmp_eq_u64", "vcc", -1), raw(f"s_cbranch_scc1 L_{name}_ok", "branch"))
        p(side_begin())
        p(salu("s_cmp_gt_u32", sT2, 400000), raw(f"s_cbranch_scc1 L_{name}_ok", "branch"))
        p(raw("s_sleep 1"), load(), drain(lgkm=False), raw(f"s_branch L_{name}_chk", "branch"))
        p(side_end())
        p(label(f"L_{name}_ok"))

    def tail_setup(self):
        scb, sb0 = sT2, sFrag
        out = [salu("s_lshl_b32", sT0, sJ, 1), salu("s_lshr_b32", sT1, sW, 1), salu("s_add_u32", sT0, sT0, sT1),
               salu("s_lshr_b32", sT1, sT0, 2), salu("s_lshl_b32", sT1, sT1, 3), salu("s_and_b32", sT0, sT0, 3),
               salu("s_add_u32", scb, sT0, sT1),
               salu("s_lshl_b32", sb0, sTB, 19), salu("s_lshl_b32", sT0, scb, 11), salu("s_add_u32", sb0, sb0, sT0),
               salu("s_and_b32", sT1, sW, 1), salu("s_lshl_b32", sT0, sT1, 10), salu("s_add_u32", sb0, sb0, sT0)]
        vx, t1 = vX, V(57)
        out += [salu("s_lshl_b32", sT0, sTB, 16), salu("s_lshl_b32", sT1, sT1, 15), salu("s_add_u32", sT0, sT0, sT1),
                salu("s_lshl_b32", sT1, scb, 5), salu("s_add_u32", sT0, sT0, sT1),
                valu("v_bfe_u32", vx, vLin0, 4, 5), valu("v_lshlrev_b32", vx, 10, vx), valu("v_lshrrev_b32", t1, 9, vLin0),
                valu("v_lshlrev_b32", t1, 4, t1), valu("v_add3_u32", vx, vx, t1, sT0)]
        out += [salu("s_lshl_b32", sT0, sTB, 3), valu("v_mov_b32", vStartOff, sT0),
                salu("s_lshl_b32", sT0, sTB, 12), salu("s_add_u32", sT0, sT0, WS_FLAG),
                valu("v_bfe_u32", vFlOff, vLin0, 4, 3), valu("v_lshlrev_b32", vFlOff, 7, vFlOff),
                valu("v_add_u32", vFlOff, sT0, vFlOff)]
        out += [salu("s_lshl_b32", sT0, sTB, 5), salu("s_add_u32", sT0, sT0, sJ), salu("s_lshl_b32", sT0, sT0, 7),
                salu("s_add_u32", sT0, sT0, WS_FLAG), valu("v_lshrrev_b32", V(58), 4, vLin0)]
        out.append(self.one_lane(vFlag, V(58), sT0, V(59)))
        out += [valu("v_mov_b32", V(60), 1)]
        return out

    def part_loads(self, base, ps, dst):
        out = []
        for j in range(8):
            out.append([salu("s_add_u32", sT0, sFrag, base + j * 65536 + ps * 8192), buf_load(dst[j], vLin0, srdWS, sT0, 0, "sc1")])
        return out

    def silu(self, Bv, e):
        out = []
        for i in range(8): out.append(valu("v_mul_f32", e[i], S(52), Bv[i]))
        for i in range(8): out.append(valu("v_exp_f32", e[i], e[i]))
        for i in range(8): out.append(valu("v_add_f32", e[i], 1.0, e[i]))
        for i in range(8): out.append(valu("v_rcp_f32", e[i], e[i]))
        for i in range(8): out.append(valu("v_mul_f32", Bv[i], e[i], Bv[i]))
        return out

    def finish(self, ps, src, gate, xr):
        xf = V(1 + 8 * ps, 8); sv = V(18 + 8 * ps, 8); o = V(36 + 4 * ps, 4)
        out = []
        for i in range(4):
            out += [valu("v_lshlrev_b32", xf[2 * i], 16, xr[i]), valu("v_and_b32", xf[2 * i + 1], 0xffff0000, xr[i])]
        out += self.reduce8(src, sv)
        for i in range(8): out.append(valu("v_fma_f32", xf[i], gate[i], sv[i], xf[i]))
        for i in range(4): out.append(valu("v_cvt_pk_bf16_f32", o[i], xf[2 * i], xf[2 * i + 1]))
        out.append(buf_store(o, vX, srdOut, 0, 128 * ps))
        return out

    def tail(self, acc1):
        p = self.p
        T = lambda: p(self.stamp("tail"))
        T()
        pk = self.s_pack(acc1)
        order = [0, 2, 1, 3, 4, 6, 5, 7]
        first = len(self.s_stores)
        for k in range(8):
            p(pk[4 * k:4 * k + 4])
            sc, st = self.s_store(acc1, 1, order[k])
            p(sc, st)
        T()
        p(waitfor(self.s_stores[first:]))
        T()
        p(barrier())
        p(buf_store(V(60), vFlag, srdWS, 0, 2048, "sc1"))
        fl = lambda off, reg: (lambda: buf_load(reg, vFlOff, srdWS, 0, off, "sc1"))
        f0, f1 = vBfl, vStart
        p(fl(1024, f0)())
        p(salu("s_mov_b32", S(48), 0x00003f80), salu("s_mov_b32", S(49), 0x3f800000),
          salu("s_mov_b32", S(52), f2u(-1.4426950408889634)), salu("s_mov_b32", sT2, 0))
        gate = [V(208, 8), V(216, 8)]; e = V(224, 8)
        src = [V(4 * j, 4) for j in range(8)]
        def bred(ps):
            for j in range(8):
                for i in range(4): p(valu("v_accvgpr_read_b32", src[j][i], BIN[ps][j][i]))
            p(self.reduce8(src, gate[ps]), self.silu(gate[ps], e))
        bred(0)
        T()
        self.poll("s0flag", fl(1024, f0), f0, 1)
        Ssrc = [[V(64 + (ps * 8 + j) * 4, 4) for j in range(8)] for ps in range(2)]
        p(self.part_loads(WS_S, 0, Ssrc[0]))
        p(fl(2048, f1)())
        T()
        bred(1)
        T()
        self.poll("s1flag", fl(2048, f1), f1, 1)
        T()
        p(self.part_loads(WS_S, 1, Ssrc[1]))
        p(self.finish(0, Ssrc[0], gate[0], self.xr[0]))
        T()
        p(self.finish(1, Ssrc[1], gate[1], self.xr[1]))
        T()

    def main(self):
        p = self.p
        self.build_stream()
        self.init_slots()
        if self.stamps or self.o("dbgspan", 0): p(raw("s_memrealtime s[98:99]", "other"))
        self.prologue()
        p(self.stamp())
        self.layernorm()
        p(self.stamp())
        self.dump_lds("xn", X_BASE, 65536, 0)
        xn = lambda s, nt: A((s * 2 + nt) * 4, 4)
        xload = lambda s, nt: ds_read(xn(s, nt), vXn[s & 1], s * 2048 + nt * 1024)
        p(self.read_slab(G0, 0), xload(0, 0), xload(0, 1), self.read_slab(G0, 1))
        def pf_extra(items):
            def f(s):
                g = [[], [], [], []]
                if s in items and self.o("pf", 1):
                    ins, lds = items[s]()
                    g[0] = ins; g[2] = lds[:1]; g[3] = lds[1:]
                return g
            return f
        pfg = {self.o("pfs1", 3): (1, "b"), self.o("pfs2", 12): (2, "c"), self.o("pfs3", 21): (3, "d")}
        def extraG(s):
            g = [[], [], [], []]
            if s in pfg and self.o("pf", 1): return g + [self.pf_batch(*pfg[s])]
            return g
        self.gemm_pass(G0, 32, ACC[0], xn, bload=xload, extra=extraG)
        p(self.stamp())
        p(barrier())
        for t in range(2): p(valu("v_subrev_u32", vTrX[t], W_BASE - X_BASE, vTr[t]))
        if self.o("xring", 0): self.add_slots("X", 8, lambda idx: idx < D10)
        pfx = {} if not self.o("pfq", 0) else {2: lambda: self.pf_kind("Q0", [V(218), V(219)])}
        self.gemm_pass(U0, 32, ACC[1], xn, extra=pf_extra(pfx))
        p(self.stamp())
        self.bg.extend(self.h_epi(ACC[0], ACC[1]))
        self.gemm_pass(Q00, 32, ACC[2], xn, bg_start=self.o("q0bg", 4), cap=self.o("q0cap", 5))
        self.flush_bg()
        if self.o("hw", "b128") == "end": p(self.h_writes)
        p(waitfor(self.h_writes), barrier())
        p(self.stamp())
        self.dump_lds("h", H_BASE, 28672, 1)
        self.bg.extend(self.q_epi(ACC[2], 0))
        self.gemm_pass(Q10, 32, ACC[0], xn, bg_start=4,
                       extra=None)
        self.flush_bg()
        p(self.stamp())
        hb = lambda s, nt: BF.sub((s % 2) * 8 + nt * 4, 4)
        p(self.hload(0, 0), self.hload(0, 1))
        self.bg.extend(self.q_epi(ACC[0], 1))
        self.bg.extend(self.att_addr())
        self.gemm_pass(D00, 14, ACC[1], hb, bload=self.hload, bg_start=4,
                       extra=pf_extra({2: lambda: self.pf_kind("P0", [V(190), V(191)])}))
        self.flush_bg()
        p(self.hload(0, 0), self.hload(0, 1))
        self.bg.extend(self.b_pack(ACC[1], 0))
        self.bg.extend(self.tail_setup())
        def extraD1(s):
            g = [[], [], [], []]
            dm = []
            if s == 0: dm = self.k_dma(0)
            if s == 1: dm = self.v_dma(0)
            if s == 2: dm = self.k_dma(1)
            if s == 3: dm = self.v_dma(1)
            if s == 4: dm = self.k_dma(2)
            if dm: g[0] = dm[:2]; g[1] = dm[2:]
            if s == 0: return g + [[barrier()]]
            if s == 9: g[2] = [waitfor(self.kd[0]), barrier()]
            if s >= 10:
                kr = self.k0_reads
                g[2] = kr[2 * (s - 10):2 * (s - 10) + 2]
            return g
        self.k0_reads = self.k_reads(0)
        self.gemm_pass(D10, 14, ACC[2], hb, bload=self.hload, extra=extraD1, bg_start=4, next_reads=False)
        self.flush_bg()
        p(self.stamp())
        qk0 = self.qk_mfmas(0, 0)
        bp = self.b_pack(ACC[2], 1)
        p(qk0[0], qk0[1], qk0[2])
        for i in range(3, 16):
            p(qk0[i]); p(bp[5 * (i - 3):5 * (i - 2)])
        p(bp[65:])
        p(raw("s_branch L_att_go", "branch"))
        p(label("L_att"))
        p(self.qk_mfmas(0, 0))
        p(label("L_att_go"))
        p(nop(7))
        self.attention_body()
        p(self.stamp())
        self.o_writes = []; self.s_stores = []
        own = lambda s, nt: V(8 * ((2 * s + nt) % 4), 4)
        hb = lambda s, nt: BF2.sub((s % 2) * 8 + nt * 4, 4)
        ob = lambda s, nt: own(s, nt) if s < 8 else hb(s, nt)
        p(self.o_group(0, 0), self.o_group(0, 1))
        def obload(s, nt):
            return None if s < 8 else self.oload(s, nt)
        def extraP0(s):
            g = [[], [], [], []]
            if s < 7:
                self.bg.extend(self.o_group(s + 1, 0)); self.bg.extend(self.o_group(s + 1, 1))
            if s == 7:
                pre = [valu("v_add_u32", vOb[1], sOblk[1], vLinX), waitfor(self.o_writes), barrier()]
                return g + [pre]
            if s in (15, 23):
                b = (s + 1) >> 3
                return g + [[valu("v_add_u32", vOb[b & 1], sOblk[b], vLinX)]]
            return g
        for s in range(8):
            self.gemm_pass(P00, 32, ACC[1], ob, bload=obload, extra=extraP0, cap=11, bg_start=0, k0=s, k1=s + 1)
            self.flush_bg()
        self.gemm_pass(P00, 32, ACC[1], ob, bload=obload, extra=extraP0, k0=8)
        p(self.stamp())
        p(valu("v_add_u32", vOb[0], sOblk[0], vLinX))
        p(self.oload(0, 0), self.oload(0, 1))
        self.bg.extend(self.s_pack(ACC[1]))
        self.xr = [V(200, 4), V(204, 4)]
        st_steps = [3, 5, 8, 10, 13, 15, 18, 20]
        def extraP1(s):
            g = [[], [], [], []]; pre = []
            if s in (7, 15, 23):
                b = (s + 1) >> 3
                pre += [valu("v_add_u32", vOb[b & 1], sOblk[b], vLinX)]
            if s in st_steps:
                sc, st = self.s_store(ACC[1], 0, st_steps.index(s))
                g[0] = sc; g[1] = [st]
            if s == self.o("s0pub", 27):
                pre += [waitfor(self.s_stores), barrier(), buf_store(V(60), vFlag, srdWS, 0, 1024, "sc1")]
            if s in (26, 27):
                g[0] = g[0] + [buf_load(self.xr[s - 26], vX, srdX, 0, 128 * (s - 26))]
            return g + [pre]
        self.gemm_pass(P10, 32, ACC[2], hb, bload=self.oload, extra=extraP1, bg_start=4, next_reads=False)
        self.flush_bg()
        p(self.stamp())
        self.tail(ACC[2])
        p(drain())
        p(self.stamp(), self.stamp("tail"))
        if self.o("dbgspan", 0):
            p(raw("s_memrealtime s[100:101]", "other"), raw("s_waitcnt lgkmcnt(0)"))
            p(salu("s_not_b32", S(98), S(98)), valu("v_mov_b32", V(0), S(98)), valu("v_mov_b32", V(1), S(100)))
            p(valu("v_mov_b32", V(2), 4), valu("v_mov_b32", V(3), 12))
            p(raw("s_mov_b64 exec, 1", "salu", wr=["exec"]))
            p(raw(f"buffer_atomic_umax v0, v2, {srdDbg}, 0 offen", "vatomic"), raw(f"buffer_atomic_umax v1, v3, {srdDbg}, 0 offen", "vatomic"))
            p(drain())
        if self.stamps:
            p(raw("s_memrealtime s[100:101]", "other"))
            p(raw("s_waitcnt lgkmcnt(0)"))
            p(valu("v_mov_b32", V(0), 0))
            p(raw("v_writelane_b32 v0, s98, 16", "valu", wr=["v0"]), raw("v_writelane_b32 v0, s100, 17", "valu", wr=["v0"]))
            for k in range(min(self.nstamp, 12)):
                p(raw(f"v_writelane_b32 v0, s{STAMP0+2*k}, {k}", "valu", wr=["v0"]))
            p(salu("s_lshl_b32", sT0, S(2), 2), salu("s_add_u32", sT0, sT0, sW), salu("s_lshl_b32", sT0, sT0, 8),
              salu("s_add_u32", sT0, sT0, WS_STAMP))
            p(valu("v_lshrrev_b32", V(1), 2, vLin0))
            p(buf_store(V(0), V(1), srdWS, sT0))
            p(drain())
        p(label("L_end"), raw("s_endpgm", "end"))
        self.fallback()
        p(label("L_code_end"), raw("s_endpgm", "end"))


def kd(name, vgpr, accum, sgpr=102):
    return f""".amdhsa_kernel {name}
  .amdhsa_next_free_vgpr {vgpr}
  .amdhsa_next_free_sgpr {sgpr}
  .amdhsa_accum_offset {accum}
  .amdhsa_group_segment_fixed_size 0
  .amdhsa_kernarg_size 96
  .amdhsa_user_sgpr_count 2
  .amdhsa_user_sgpr_kernarg_segment_ptr 1
  .amdhsa_system_sgpr_workgroup_id_x 1
.end_amdhsa_kernel
"""

def build(stamps=False, dumps=(), **opt):
    g = Gen(stamps, dumps, **opt)
    g.main()
    l1, st1 = g.p.finalize()
    hdr = open("cdna_kernels/" + NAME + ".s.ref").read().split("; Override launch")[0]
    k1 = NAME + "_kernel"
    s = hdr
    s += f"; @launch grid=(256,1,1) block=(256,1,1) lds={LDS_BYTES}\n"
    s += '.amdgcn_target "amdgcn-amd-amdhsa--gfx950"\n.text\n'
    s += f".globl {k1}\n.p2align 8\n.type {k1},@function\n{k1}:\n" + "\n".join(l1) + "\n"
    s += '.section .rodata,"a"\n.p2align 6\n' + kd(k1, 512, 256)
    return s, (len(l1), st1)

if __name__ == "__main__":
    import argparse
    ap = argparse.ArgumentParser()
    ap.add_argument("-o", default="cdna_kernels/" + NAME + ".s")
    ap.add_argument("--stamps", action="store_true")
    ap.add_argument("--dumps", default="")
    ap.add_argument("--opt", default="")
    a = ap.parse_args()
    opts = dict(kv.split("=") for kv in a.opt.split(",") if kv)
    s, info = build(a.stamps, [d for d in a.dumps.split(",") if d], **opts)
    open(a.o, "w").write(s)
    print(info, len(s), "bytes")
```
